```python
import torch

def _softmax(x, axis=-1):
    return torch.softmax(x, dim=axis)
def _gelu(x):
    return torch.nn.functional.gelu(x, approximate="tanh")
def _silu(x):
    return torch.nn.functional.silu(x)
def _sigmoid(x):
    return torch.sigmoid(x)
def _layernorm(x, axis=-1, eps=1e-5):
    m = x.mean(dim=axis, keepdim=True)
    v = x.var(dim=axis, keepdim=True, unbiased=False)
    return (x - m) / torch.sqrt(v + eps)
def _scatter_add(tgt, idx, src, axis=0):
    return tgt.clone().index_add_(axis, idx, src)
def _segment_sum(src, seg, n):
    out = torch.zeros((n,) + src.shape[1:], dtype=src.dtype)
    return out.index_add_(0, seg, src)
def _pad(x, pw):
    flat = tuple(v for pair in reversed(pw) for v in pair)
    return torch.nn.functional.pad(x, flat)

kernel_name = 'gated_mix__spectral_fnet__mha_block__prompt'

def setup_inputs():

    _w = (lambda a: (lambda t: t.to(torch.bfloat16) if t.is_floating_point() else t)(torch.as_tensor(a)))
    def _A_setup():
        B, S, D = 1, 2048, 1024
        ns = torch.arange(S)[:, None] * torch.arange(S)[None, :]
        nd = torch.arange(D)[:, None] * torch.arange(D)[None, :]
        Ws_re = torch.cos(-2.0 * torch.pi * ns / S).to(float)
        Ws_im = torch.sin(-2.0 * torch.pi * ns / S).to(float)
        Wd_re = torch.cos(-2.0 * torch.pi * nd / D).to(float)
        Wd_im = torch.sin(-2.0 * torch.pi * nd / D).to(float)
        return {
            "x": _w((lambda *s: torch.randn(*s, dtype=torch.bfloat16) * 0.05)(B, S, D)),
            "dft_seq_re": _w(Ws_re),
            "dft_seq_im": _w(Ws_im),
            "dft_hid_re": _w(Wd_re),
            "dft_hid_im": _w(Wd_im),
        }
    _A_in = _A_setup()

    def _B_setup():
        B, S, D, H = 1, 2048, 1024, 32
        return {
            "x": _w((lambda *s: torch.randn(*s, dtype=torch.bfloat16) * 0.05)(B, S, D)),
            "wqkv": _w((lambda *s: torch.randn(*s, dtype=torch.bfloat16) * 1.6)(D, 3 * D)),
            "wo": _w((lambda *s: torch.randn(*s, dtype=torch.bfloat16) * 0.2)(D, D)),
        }
    _B_in = _B_setup()

    return {
        "A_x": _A_in["x"],
        "A_dft_seq_re": _A_in["dft_seq_re"],
        "A_dft_seq_im": _A_in["dft_seq_im"],
        "A_dft_hid_re": _A_in["dft_hid_re"],
        "A_dft_hid_im": _A_in["dft_hid_im"],
        "B_x": _B_in["x"],
        "B_wqkv": _B_in["wqkv"],
        "B_wo": _B_in["wo"],
        "gate_w": _w((lambda *s: torch.randn(*s, dtype=torch.bfloat16) * 0.05)(1024) * 16.0),
    }

def reference(A_x, A_dft_seq_re, A_dft_seq_im, A_dft_hid_re, A_dft_hid_im, B_x, B_wqkv, B_wo, gate_w):
    def _A_ref(x, dft_seq_re, dft_seq_im, dft_hid_re, dft_hid_im):
        a = torch.einsum("bsd,ed->bse", x, dft_hid_re)
        b = torch.einsum("bsd,ed->bse", x, dft_hid_im)
        y = torch.einsum("ts,bse->bte", dft_seq_re, a) - torch.einsum("ts,bse->bte", dft_seq_im, b)
        return y

    def _B_ref(x, wqkv, wo):
        B, S, D = x.shape
        H = 32
        Dh = D // H
        qkv = (lambda x, *d: x.permute(*d))((x @ wqkv).reshape(B, S, 3, H, Dh), 2, 0, 3, 1, 4)
        q, k, v = qkv[0], qkv[1], qkv[2]
        scores = torch.einsum("bhqd,bhkd->bhqk", q, k) * (Dh ** -0.5)
        p = _softmax(scores, axis=-1)
        o = torch.einsum("bhqk,bhkd->bhqd", p, v)
        return (lambda x, *d: x.permute(*d))(o, 0, 2, 1, 3).reshape(B, S, D) @ wo

    x = A_x
    g = _sigmoid((x * gate_w).sum(-1, keepdims=True))
    a = _A_ref(x, A_dft_seq_re, A_dft_seq_im, A_dft_hid_re, A_dft_hid_im)
    b = _B_ref(x, B_wqkv, B_wo)
    return g * a + (1 - g) * b
```

```python
import re

TRANS = ("v_exp_", "v_log_", "v_rcp_", "v_rsq_", "v_sqrt_", "v_sin_", "v_cos_")

def _regs(tok):
    tok = tok.strip()
    tok = tok.lstrip("-").strip("|")
    m = re.fullmatch(r"([vsa])(\d+)", tok)
    if m: return {(m.group(1), int(m.group(2)))}
    m = re.fullmatch(r"([vsa])\[(\d+):(\d+)\]", tok)
    if m: return {(m.group(1), i) for i in range(int(m.group(2)), int(m.group(3)) + 1)}
    if tok in ("vcc", "vcc_lo", "vcc_hi"): return {("s", "vcc")}
    if tok in ("exec", "exec_lo", "exec_hi"): return {("s", "exec")}
    if tok == "m0": return {("s", "m0")}
    return set()

class Ins:
    def __init__(self, text):
        self.text = text
        t = text.split(";")[0].strip()
        self.op = t.split()[0] if t else ""
        rest = t[len(self.op):].strip()
        toks = [x.strip() for x in rest.split(",")] if rest else []
        mods = ""
        if toks:
            parts = toks[-1].split()
            if parts:
                toks[-1] = parts[0]; mods = " ".join(parts[1:])
        self.mods = mods
        op = self.op
        R = [_regs(x) for x in toks]
        self.cls = "other"; self.dst = set(); self.src = set()
        self.states = 1
        self.srcC = set(); self.srcAB = set(); self.passes = 0
        self.wide_store = set()
        U = lambda l: set().union(*l) if l else set()
        if op == "s_nop":
            self.states = int(toks[0], 0) + 1
        elif op.startswith("v_smfmac"):
            self.cls = "mfma"; self.dst = R[0]; self.srcAB = R[1] | R[2] | R[3]; self.srcC = R[0]
            self.src = self.srcAB | self.srcC
            self.passes = 8 if "32x32x32" in op else 4
            assert "16x16x64" in op or "32x32x32" in op
        elif op.startswith("v_mfma"):
            self.cls = "mfma"; self.dst = R[0]; self.srcAB = R[1] | R[2]; self.srcC = R[3]
            self.src = self.srcAB | self.srcC
            self.passes = 8 if "32x32x16" in op else 4
            assert "32x32x16" in op or "16x16x32" in op
        elif op.startswith("v_"):
            self.cls = "valu"
            self.dst = R[0]; self.src = U(R[1:])
            if op.startswith(("v_permlane", "v_swap")):
                self.dst = R[0] | R[1]; self.src = R[0] | R[1]
            if op.startswith(("v_fmac", "v_dot2c", "v_mac", "v_writelane")) or "_dpp" in op or "row_" in mods or "quad_perm" in mods:
                self.src |= R[0]
            if op.startswith(("v_add_co", "v_sub_co", "v_addc_co", "v_subb_co")):
                self.dst = R[0] | R[1]; self.src = U(R[2:])
            if op.startswith("v_cndmask") and len(toks) == 3: self.src |= {("s", "vcc")}
            assert not op.startswith("v_cmpx")
        elif op.startswith(("buffer_", "global_")):
            self.cls = "vmem"
            if "store" in op:
                self.src = U(R)
                if "x3" in op or "x4" in op: self.wide_store = R[0] if op.startswith("buffer") else R[1]
            elif " lds" in (" " + mods):
                self.src = U(R) | {("s", "m0")}
            else:
                self.dst = R[0]; self.src = U(R[1:])
        elif op.startswith("ds_"):
            self.cls = "ds"
            if "write" in op: self.src = U(R)
            else: self.dst = R[0]; self.src = U(R[1:])
        elif op.startswith("s_"):
            self.cls = "salu"
            if op.startswith(("s_cmp", "s_cbranch", "s_branch", "s_waitcnt", "s_barrier", "s_setprio", "s_endpgm", "s_bitcmp", "s_sleep")):
                self.src = U(R)
            else:
                self.dst = R[0] if R else set(); self.src = U(R[1:])
                if "saveexec" in op: self.dst |= {("s", "exec")}
        self.trans = op.startswith(TRANS)
        self.dot = op.startswith("v_dot")
        self.dpp = self.cls == "valu" and ("_dpp" in op or "row_" in mods or "quad_perm" in mods)
        self.perml = op.startswith("v_permlane")
        self.rdlane = op.startswith(("v_readlane", "v_readfirstlane"))

def vonly(s): return {r for r in s if r[0] in "va"}
def sonly(s): return {r for r in s if r[0] == "s"}

def need(p, c):
    n = 0
    if p.cls == "valu":
        pv = vonly(p.dst); ps = sonly(p.dst)
        if c.cls == "mfma" and pv & c.src: n = max(n, 3 if p.dot else 2)
        if c.cls == "valu":
            if p.trans and not c.trans and pv & c.src: n = max(n, 1)
            if (c.dpp or c.perml) and pv & c.src: n = max(n, 2)
            if c.rdlane and pv & c.src: n = max(n, 1)
            if ps & c.src: n = max(n, 4 if c.op.startswith(("v_readlane", "v_writelane")) else 2)
            if p.dot:
                if c.op == p.op:
                    if pv & (c.src - c.dst): n = max(n, 3)
                elif pv & (c.src | c.dst): n = max(n, 3)
        if p.dot and c.cls in ("vmem", "ds") and pv & c.src: n = max(n, 3)
        if c.cls == "vmem" and ps & c.src: n = max(n, 5)
    elif p.cls == "mfma":
        big = 12 if p.passes == 8 else 8
        if c.cls == "mfma":
            if p.dst & c.srcAB: n = max(n, big)
            if p.dst & c.srcC:
                if not (p.dst == c.srcC and p.passes == c.passes): n = max(n, big - 2)
            elif p.dst & c.dst: n = max(n, big - 2)
        elif c.cls in ("valu", "vmem", "ds"):
            if p.dst & (c.src | c.dst): n = max(n, big)
            if c.cls == "valu" and p.srcC & c.dst: n = max(n, 7 if p.passes == 8 else 3)
    elif p.cls == "salu":
        if ("s", "m0") in p.dst and c.cls == "vmem" and ("s", "m0") in c.src: n = max(n, 1)
    elif p.cls == "vmem":
        if p.wide_store & c.dst: n = max(n, 2)
    elif p.cls == "ds":
        if c.dpp and p.dst & c.src: n = max(n, 0)
    return n

class Asm:
    def __init__(self):
        self.items = []
        self.npad = 0
    def __call__(self, text):
        for line in text.split("\n"):
            line = line.strip()
            if not line: continue
            if line.startswith(";"): self.items.append(("r", "    " + line)); continue
            if line.startswith("."): self.items.append(("r", line)); continue
            if line.endswith(":"): self.items.append(("l", line[:-1])); continue
            self.items.append(("i", Ins(line)))
    def raw(self, text): self.items.append(("r", text))
    def label(self, l): self.items.append(("l", l))
    @staticmethod
    def _req(win, c):
        dist = 0; miss = 0
        for p in reversed(win):
            n = need(p, c)
            if n > dist: miss = max(miss, n - dist)
            dist += p.states
            if dist > 14: break
        return miss
    def finish(self):
        out = []; win = []
        for kind, it in self.items:
            if kind == "i":
                m = self._req(win, it)
                if m:
                    nop = Ins(f"s_nop {m-1}"); out.append(("i", nop)); win.append(nop); self.npad += 1
                out.append((kind, it)); win.append(it); win = win[-16:]
                if it.op in ("s_branch", "s_endpgm"): win = []
            else:
                out.append((kind, it))
        pos = {it: i for i, (k, it) in enumerate(out) if k == "l"}
        for i, (k, it) in enumerate(out):
            if k == "i" and it.op.startswith(("s_cbranch", "s_branch")):
                tgt = it.text.split(";")[0].split()[1]
                w = [x for kk, x in out[max(0, i - 40):i + 1] if kk == "i"][-16:]
                d = 0
                for kk, x in out[pos[tgt]:pos[tgt] + 40]:
                    if kk != "i": continue
                    m = self._req(w, x)
                    assert m == 0, f"hazard across branch '{it.text}' at '{x.text}' missing {m}"
                    w.append(x); d += x.states
                    if d > 14 or x.op in ("s_branch", "s_endpgm"): break
        lines = []
        for k, it in out:
            if k == "i": lines.append("    " + it.text)
            elif k == "l": lines.append(it + ":")
            else: lines.append(it)
        return "\n".join(lines) + "\n"

def v(a, n=1): return f"v{a}" if n == 1 else f"v[{a}:{a+n-1}]"
def s(a, n=1): return f"s{a}" if n == 1 else f"s[{a}:{a+n-1}]"
def f2u(x):
    import struct
    return "0x%08x" % struct.unpack("<I", struct.pack("<f", x))[0]

import os
STAMPS = bool(os.environ.get("STAMPS"))
STAMP_OFF = 25 << 20
def stamp(a, i, real=False):
    if not STAMPS: return
    real = real or os.environ.get("RT")
    a(f"{'s_memrealtime' if real else 's_memtime'} s[{64+2*i}:{65+2*i}]")
def stamp_flush(a, n, srd, kidx, wave_sreg, vt=250):
    if not STAMPS: return
    a(f"""s_waitcnt lgkmcnt(0)
    s_lshl_b32 s62, s2, 3
    s_add_u32 s62, s62, s{wave_sreg}
    s_lshl_b32 s62, s62, 6
    s_add_u32 s62, s62, {STAMP_OFF + kidx * 256 * 8 * 64}
    s_mov_b64 exec, 1
    v_mov_b32 v{vt}, 0""")
    for i in range(n):
        a(f"v_mov_b32 v{vt+1}, s{64+2*i}")
        a(f"buffer_store_dword v{vt+1}, v{vt}, s[{srd}:{srd+3}], s62 offen offset:{4*i}")
```

```python
from asmlib import *
from layout import *
import math

def merge(a, groups, fill):
    n = len(groups); k = 0
    for i, g in enumerate(groups):
        for t in g: a(t)
        e = (len(fill) * (i + 1)) // n
        for t in fill[k:e]: a(t)
        k = e

def gen_k1(a, side=True):
    SX, SW, SWS, SG = 8, 12, 16, 20
    a(f"""
    s_cmp_ge_u32 s2, 256
    s_cbranch_scc1 K1_END
    s_load_dwordx2 s[{SX}:{SX+1}], s[0:1], {A_X}
    s_load_dwordx2 s[{SW}:{SW+1}], s[0:1], {B_WQKV}
    s_load_dwordx2 s[{SWS}:{SWS+1}], s[0:1], {WS}
    s_load_dwordx2 s[{SG}:{SG+1}], s[0:1], {GATE}
    v_lshrrev_b32 v1, 6, v0
    v_and_b32 v99, 63, v0
    s_mov_b32 s{SX+2}, 0x400000
    v_readfirstlane_b32 s3, v1
    s_mov_b32 s{SX+3}, 0x20000
    s_mov_b32 s{SW+2}, 0x600000
    s_mov_b32 s{SW+3}, 0x20000
    s_mov_b32 s{SWS+2}, {WS_USED}
    s_mov_b32 s{SWS+3}, 0x20000
    s_mov_b32 s{SG+2}, 0x800
    s_mov_b32 s{SG+3}, 0x20000
    s_and_b32 s4, s2, 1
    s_lshl_b32 s4, s4, 3
    s_bfe_u32 s5, s2, 0x30003
    s_add_u32 s4, s4, s5
    s_bfe_u32 s5, s2, 0x20001
    s_lshl_b32 s5, s5, 2
    s_lshr_b32 s6, s2, 6
    s_add_u32 s5, s5, s6
    s_cmp_ge_u32 s3, 4
    s_cbranch_scc1 K1_PROD
    """)
    L = 99
    stamp(a, 0, True); stamp(a, 1)
    XF = lambda b, tt: 96 + 4 + 8 * b + 4 * tt
    WF = lambda b, sg: 116 + 12 * b + 4 * sg
    XA = 140; WA = 144; T0 = 146
    a(f"""
    s_setprio 2
    s_and_b32 s24, s3, 1
    s_lshr_b32 s25, s3, 1
    v_and_b32 v{T0}, 31, v{L}       ; r
    v_lshrrev_b32 v{T0+1}, 5, v{L}  ; h
    v_bfe_u32 v{T0+2}, v{L}, 1, 3   ; (r>>1)&7
    v_xor_b32 v{T0+2}, v{T0+2}, v{T0+1}
    v_lshlrev_b32 v{T0+2}, 4, v{T0+2}
    v_lshl_or_b32 v{T0+2}, v{T0}, 7, v{T0+2}
    s_lshl_b32 s26, s24, 13
    v_add_u32 v{XA}, s26, v{T0+2}
    v_xor_b32 v{XA+1}, 32, v{XA}
    v_xor_b32 v{XA+2}, 64, v{XA}
    v_xor_b32 v{XA+3}, 96, v{XA}
    ; W address
    v_bfe_u32 v{T0+2}, v{L}, 2, 2   ; rr
    v_lshl_or_b32 v{T0+2}, v{T0+1}, 3, v{T0+2}
    v_lshlrev_b32 v{T0+2}, 7, v{T0+2}
    v_bfe_u32 v{T0+3}, v{L}, 3, 1   ; (rr>>1)&1
    v_xor_b32 v{T0+3}, s25, v{T0+3}
    v_lshl_or_b32 v{T0+2}, v{T0+3}, 6, v{T0+2}
    v_bfe_u32 v{T0+3}, v{L}, 4, 1   ; g2
    v_lshl_or_b32 v{T0+2}, v{T0+3}, 5, v{T0+2}
    v_and_b32 v{T0+3}, 3, v{L}
    v_lshl_or_b32 v{T0+2}, v{T0+3}, 3, v{T0+2}
    v_add_u32 v{WA}, 0x10000, v{T0+2}
    v_add_u32 v{WA+1}, 0x1c000, v{T0+2}
    v_lshlrev_b32 v{T0}, 4, v{L}
    """)
    for i in range(96): a(f"v_mov_b32 v{i}, 0")
    def reads(slot, st, b):
        r = []
        for tt in range(2):
            r.append(f"ds_read_b128 {v(XF(b,tt),4)}, v{XA+st} offset:{slot*16384 + tt*4096}")
        for sg in range(3):
            for sec in range(2):
                r.append(f"ds_read_b64_tr_b16 {v(WF(b,sg)+2*sec,2)}, v{WA+(slot>>1)} offset:{(slot&1)*24576 + sg*8192 + st*2048 + sec*512}")
        return [[r[0], r[2], r[3]], [r[1], r[4], r[5]], [r[6], r[7]]]
    def mfmas(b):
        m = []
        for sg in range(3):
            for tt in range(2):
                acc = v(16 * (tt * 3 + sg), 16)
                if sg < 2: m.append(f"v_mfma_f32_32x32x16_bf16 {acc}, {v(WF(b,sg),4)}, {v(XF(b,tt),4)}, {acc}")
                else:      m.append(f"v_mfma_f32_32x32x16_bf16 {acc}, {v(XF(b,tt),4)}, {v(WF(b,sg),4)}, {acc}")
        return m
    a("s_mov_b32 s27, 4")
    stamp(a, 2)
    a("s_barrier")
    stamp(a, 3)
    for g in reads(0, 0, 0):
        for t in g: a(t)
    a(".p2align 6")
    a.label("K1_CLOOP")
    for slot in range(4):
        for st in range(4):
            b = st & 1
            m = mfmas(b)
            nslot, nst = (slot, st + 1) if st < 3 else ((slot + 1) & 3, 0)
            rd = reads(nslot, nst, b ^ 1)
            a("s_waitcnt lgkmcnt(0)")
            a(m[0])
            if st == 3:
                if slot == 3:
                    a("s_sub_u32 s27, s27, 1")
                    a("s_cmp_eq_u32 s27, 0")
                    a("s_cbranch_scc1 K1_CTAIL")
                a("s_barrier")
            for i in range(3):
                for t in rd[i]: a(t)
                a(m[i + 1])
            a(m[4])
            a(m[5])
    a("s_branch K1_CLOOP")
    a.label("K1_CTAIL")
    for t in mfmas(1)[1:]: a(t)
    stamp(a, 4)
    qs = math.log2(math.e) / math.sqrt(32.0)
    a(f"""
    s_lshl_b32 s28, s5, 1
    s_add_u32 s28, s28, s25
    s_lshl_b32 s28, s28, 6
    s_lshl_b32 s29, s4, 2
    s_add_u32 s28, s28, s29
    s_lshl_b32 s29, s24, 1
    s_add_u32 s28, s28, s29
    s_lshl_b32 s29, s28, 11          ; Q offset
    s_lshl_b32 s30, s28, 12
    s_add_u32 s30, s30, {KV}
    s_add_u32 s31, s30, 4096
    s_mov_b32 s32, {f2u(qs)}
    """)
    PK = 100
    n = 0
    for sg in range(3):
        for tt in range(2):
            base = 16 * (tt * 3 + sg)
            pk = PK + 8 * (n % 4); n += 1
            if sg == 0:
                for i in range(16): a(f"v_mul_f32 v{base+i}, s32, v{base+i}")
            for j in range(2):
                for i in range(4):
                    a(f"v_cvt_pk_bf16_f32 v{pk+4*j+i}, v{base+8*j+2*i}, v{base+8*j+2*i+1}")
                if sg == 0: so, off = 29, tt * 2048 + j * 1024
                else: so, off = 30 + tt, (sg - 1) * 2048 + j * 1024
                a(f"buffer_store_dwordx4 {v(pk+4*j,4)}, v{T0}, s[{SWS}:{SWS+3}], s{so} offen offset:{off}")
    stamp(a, 5)
    if STAMPS: a("s_waitcnt vmcnt(0)")
    stamp(a, 6); stamp(a, 7, True)
    stamp_flush(a, 8, SWS, 0, 3)
    a("s_endpgm")

    a(".p2align 6")
    a.label("K1_PROD")
    VO = 100
    T = 88
    a(f"""
    s_sub_u32 s24, s3, 4             ; p
    v_lshrrev_b32 v{T}, 3, v{L}      ; i>>3
    v_and_b32 v{T+1}, 7, v{L}        ; i&7
    v_lshrrev_b32 v{T+2}, 4, v{L}    ; i>>4
    v_xor_b32 v{T+3}, v{T+1}, v{T+2}
    v_lshlrev_b32 v{T+3}, 4, v{T+3}
    v_lshl_or_b32 v{T+3}, v{T}, 11, v{T+3}
    s_lshl_b32 s25, s4, 18           ; rt*128*2048
    s_lshl_b32 s26, s24, 16          ; p*32*2048
    s_add_u32 s25, s25, s26
    v_add_u32 v{VO}, s25, v{T+3}
    v_xor_b32 v{VO+1}, 64, v{VO}
    v_add_u32 v{VO+1}, {16384-1024}, v{VO+1}
    v_add_u32 v{VO+2}, {2*(16384-1024)}, v{VO}
    v_add_u32 v{VO+3}, {2*(16384-1024)}, v{VO+1}
    ; W
    v_and_b32 v{T+2}, 1, v{T+2}
    v_lshlrev_b32 v{T+2}, 2, v{T+2}
    v_xor_b32 v{T+3}, v{T+1}, v{T+2}
    v_lshlrev_b32 v{T+3}, 4, v{T+3}
    s_movk_i32 s26, 6144
    v_mad_u32_u24 v{T+3}, v{T}, s26, v{T+3}
    s_lshl_b32 s27, s5, 7            ; cg*128
    s_mul_i32 s28, s24, 6
    """)
    for u in range(6):
        a(f"""
        s_add_u32 s29, s28, {u}
        s_and_b32 s30, s29, 7
        s_mul_i32 s30, s30, 49152
        s_lshr_b32 s29, s29, 3
        s_lshl_b32 s29, s29, 11
        s_add_u32 s29, s29, s30
        s_add_u32 s29, s29, s27
        s_sub_u32 s29, s29, {1024*(u%3)}
        v_add_u32 v{VO+4+u}, s29, v{T+3}
        """)
    a(f"""
    s_mov_b32 s40, 0
    s_mov_b32 s41, 0
    s_lshl_b32 s42, s24, 12
    s_mul_i32 s43, s24, 6144
    s_add_u32 s43, s43, 0x10000
    s_mov_b32 s44, s42
    s_mov_b32 s45, s43
    s_add_u32 s46, s42, 0x10000
    s_waitcnt lgkmcnt(0)
    """)
    def stage_groups():
        g = []
        g.append(["s_mov_b32 m0, s42", "s_add_u32 s47, s43, 3072",
                  f"buffer_load_dwordx4 v{VO}, s[{SX}:{SX+3}], s40 offen lds"])
        for j in range(1, 4):
            g.append([f"buffer_load_dwordx4 v{VO+j}, s[{SX}:{SX+3}], s40 offen offset:{1024*j} lds"])
        for u in range(6):
            pre = []
            if u == 0: pre = ["s_mov_b32 m0, s43", "s_add_u32 s42, s42, 16384"]
            if u == 3: pre = ["s_mov_b32 m0, s47", "s_add_u32 s43, s43, 24576"]
            g.append(pre + [f"buffer_load_dwordx4 v{VO+4+u}, s[{SW}:{SW+3}], s41 offen offset:{1024*(u%3)} lds"])
        g[-1] += ["s_add_u32 s40, s40, 128", "s_add_u32 s41, s41, 393216",
                  "s_cmp_eq_u32 s42, s46", "s_cselect_b32 s42, s44, s42", "s_cselect_b32 s43, s45, s43"]
        return g
    if not side:
        for i in range(3): merge(a, stage_groups(), [])
        a("s_waitcnt vmcnt(20)\ns_barrier")
        a("s_mov_b32 s27, 13")
        a.label("K1_PLOOP")
        merge(a, stage_groups(), [])
        a("""s_waitcnt vmcnt(20)
        s_barrier
        s_sub_u32 s27, s27, 1
        s_cmp_lg_u32 s27, 0
        s_cbranch_scc1 K1_PLOOP
        s_waitcnt vmcnt(10)
        s_barrier
        s_waitcnt vmcnt(0)
        s_barrier""")
    else:
        from k1side import gen_side
        gen_side(a, stage_groups, merge, dict(SX=SX, SWS=SWS, SG=SG, L=L))
    a.label("K1_END")
    a("s_endpgm")
```

```python
from asmlib import *
from layout import *

def gen_side(a, stage_groups, merge, R):
    SX, SWS, SG, L = R["SX"], R["SWS"], R["SG"], R["L"]
    ZA, ZB, ZF, FR, FI, G1, G2, PR, PI = 0, 16, 32, 40, 48, 56, 64, 72, 80
    M = 88
    TC, TS, YR, YI, TMP, D3, GX, GW = 112, 128, 144, 160, 176, 208, 224, 240
    UNR = 110
    r_, h_, l16, e32, ang, a1, a2, a2s, gxa, uvo, t0 = [M + i for i in range(11)]
    pre = f"""
    s_and_b32 s50, s2, 7
    s_lshl_b32 s50, s50, 2
    s_add_u32 s50, s50, s24
    s_lshl_b32 s50, s50, 5
    s_lshr_b32 s51, s2, 3
    s_add_u32 s50, s50, s51
    s_sub_u32 s51, 2048, s50
    s_cmp_eq_u32 s50, 0
    s_cselect_b32 s51, 1024, s51
    s_mov_b32 s52, -1.0
    s_mov_b32 s54, {RR + 2048}
    s_add_u32 s53, s44, 49152
    s_lshl_b32 s55, s50, 11
    s_lshl_b32 s56, s51, 11
    s_sub_u32 s56, s56, 2048
    v_lshlrev_b32 v{l16}, 4, v{L}
    v_and_b32 v{r_}, 31, v{L}
    v_lshrrev_b32 v{h_}, 5, v{L}
    v_lshlrev_b32 v{gxa}, 4, v{r_}
    """.strip().split("\n")
    side_loads = [["s_mov_b32 m0, s53", "s_nop 0", f"buffer_load_dwordx4 v{l16}, s[{SX}:{SX+3}], s55 offen lds"],
                  [f"buffer_load_dwordx4 v{l16}, s[{SX}:{SX+3}], s55 offen offset:1024 lds"],
                  [f"buffer_load_dwordx4 v{l16}, s[{SX}:{SX+3}], s56 offen offset:2048 lds"],
                  [f"buffer_load_dwordx4 v{l16}, s[{SX}:{SX+3}], s56 offen offset:3072 lds"]]
    for i in range(4):
        side_loads.append([f"buffer_load_dwordx4 {v(GW+4*i,4)}, v{gxa}, s[{SG}:{SG+3}], 0 offen offset:{512*i}"])
    tw = []
    E = tw.append
    E(f"v_and_b32 v{t0}, 0x13, v{r_}")
    E(f"v_bfe_u32 v{ang}, v{r_}, 2, 1")
    E(f"v_lshl_or_b32 v{t0}, v{ang}, 3, v{t0}")
    E(f"v_bfe_u32 v{ang}, v{r_}, 3, 1")
    E(f"v_lshl_or_b32 v{t0}, v{ang}, 2, v{t0}")
    E(f"v_cvt_f32_u32 v{t0}, v{t0}")
    E(f"v_cvt_f32_u32 v{a1}, v{h_}")
    E(f"v_mul_f32 v{e32}, {f2u(-1/32)}, v{t0}")
    E(f"v_mul_f32 v{ang}, v{e32}, v{a1}")
    E(f"v_mul_f32 v{ang}, {f2u(8.0)}, v{ang}")
    def table(step_reg, base_reg, offs, cdst, sdst, pack):
        for k in range(16):
            t = TMP + 2 * (k % 4)
            if offs[k] == 0: src = base_reg
            else:
                E(f"v_fmamk_f32 v{TMP+8}, v{step_reg}, {f2u(float(offs[k]))}, v{base_reg}"); src = TMP + 8
            if pack:
                E(f"v_cos_f32 v{t}, v{src}"); E(f"v_sin_f32 v{t+1}, v{src}")
                if k % 2 == 1:
                    E(f"v_cvt_pk_bf16_f32 v{cdst+k//2}, v{t-2}, v{t}")
                    E(f"v_cvt_pk_bf16_f32 v{sdst+k//2}, v{t-1}, v{t+1}")
            else:
                E(f"v_cos_f32 v{cdst+k}, v{src}"); E(f"v_sin_f32 v{sdst+k}, v{src}")
    table(e32, ang, [16 * (k // 8) + k % 8 for k in range(16)], FR, FI, True)
    dofs = [8 * (k // 4) + k % 4 for k in range(16)]
    E(f"v_mul_f32 v{e32}, {f2u(1/1024)}, v{t0}")
    E(f"v_mul_f32 v{ang}, v{e32}, v{a1}")
    E(f"v_mul_f32 v{ang}, 4.0, v{ang}")
    table(e32, ang, dofs, TC, TS, False)
    E(f"v_and_b32 v{t0}, 15, v{r_}")
    E(f"v_cvt_f32_u32 v{t0}, v{t0}")
    E(f"v_mul_f32 v{e32}, {f2u(1/32)}, v{t0}")
    E(f"v_mul_f32 v{ang}, v{e32}, v{a1}")
    E(f"v_mul_f32 v{ang}, 4.0, v{ang}")
    E(f"v_lshrrev_b32 v{t0}, 4, v{r_}")
    E(f"v_cvt_f32_u32 v{t0}, v{t0}")
    E(f"v_fmamk_f32 v{ang}, v{t0}, {f2u(0.25)}, v{ang}")
    table(e32, ang, dofs, G1, G2, True)
    ga = []
    E = ga.append
    for i in range(32): E(f"v_mov_b32 v{ZA+i}, 0")
    E(f"v_lshlrev_b32 v{t0}, 1, v{r_}")
    E(f"v_lshl_or_b32 v{t0}, v{h_}, 9, v{t0}")
    E(f"v_add_u32 v{a1}, s53, v{t0}")
    E(f"s_add_u32 s57, s53, {4096 - 64*23}")
    E(f"v_sub_u32 v{a2}, s57, v{t0}")
    E(f"v_cmp_eq_u32 vcc, 0, v{L}")
    E(f"v_subrev_u32 v{t0}, 2048, v{a2}")
    E(f"v_lshl_or_b32 v{e32}, v{h_}, 11, v{gxa}")
    E(f"v_cndmask_b32 v{a2s}, v{a2}, v{t0}, vcc")
    E(f"v_add_u32 v{e32}, s53, v{e32}")
    E(f"v_lshlrev_b32 v{uvo}, 6, v{r_}")
    E(f"v_lshl_or_b32 v{uvo}, v{h_}, 4, v{uvo}")
    gathers = []
    for k in range(16):
        d = 16 * (k // 8) + k % 8
        gathers.append(f"ds_read_u16_d16_hi v{ZA+k}, v{a1} offset:{64*d}")
        gathers.append(f"ds_read_u16_d16_hi v{ZB+k}, v{a2s if k == 0 else a2} offset:{64*(23-d)}")
    for i in range(4):
        gathers.append(f"ds_read_b128 {v(GX+4*i,4)}, v{e32} offset:{512*i}")
    job = []
    c = []
    for k in range(16): c.append(f"v_fma_f32 v{TMP+k}, s52, v{ZB+k}, v{ZA+k}")
    for k in range(8): c.append(f"v_cvt_pk_bf16_f32 v{ZF+k}, v{TMP+2*k}, v{TMP+2*k+1}")
    mf = "v_mfma_f32_32x32x16_bf16"
    c.append(f"{mf} {v(YR,16)}, {v(ZF,4)}, {v(FR,4)}, 0")
    c.append(f"{mf} {v(YI,16)}, {v(ZF,4)}, {v(FI,4)}, 0")
    c.append(f"{mf} {v(YR,16)}, {v(ZF+4,4)}, {v(FR+4,4)}, {v(YR,16)}")
    c.append(f"{mf} {v(YI,16)}, {v(ZF+4,4)}, {v(FI+4,4)}, {v(YI,16)}")
    job.append(c)
    c = [f"v_mov_b32 v{t0}, 0"]
    for i in range(16): c.append(f"v_dot2c_f32_bf16 v{t0}, v{GX+i}, v{GW+i}")
    for sh in (1, 2, 4, 8):
        c.append(f"v_add_f32_dpp v{t0}, v{t0}, v{t0} row_shr:{sh} row_mask:0xf bank_mask:0xf bound_ctrl:0")
    c.append(f"v_add_f32_dpp v{t0}, v{t0}, v{t0} row_bcast:15 row_mask:0xa bank_mask:0xf")
    job.append(c)
    c = [f"v_cvt_pk_bf16_f32 v{t0}, v{t0}, v{t0}",
         f"v_and_b32 v{t0}, 0xffff0000, v{t0}",
         f"v_mul_f32 v{t0}, {f2u(-1.4426950408889634)}, v{t0}",
         f"v_exp_f32 v{t0}, v{t0}",
         f"v_mov_b32 v{ang}, s50",
         f"v_add_f32 v{t0}, 1.0, v{t0}",
         f"v_rcp_f32 v{t0}, v{t0}",
         f"v_mov_b32 v{e32}, s51",
         f"v_cvt_pk_bf16_f32 v{t0}, v{t0}, v{t0}",
         f"v_and_b32 v{TMP+16}, 0xffff0000, v{t0}",
         f"v_sub_f32 v{t0}, 1.0, v{TMP+16}",
         f"v_cvt_pk_bf16_f32 v{t0}, v{t0}, v{t0}",
         f"v_and_b32 v{TMP+17}, 0xffff0000, v{t0}",
         f"v_cmp_lt_u32 vcc, 31, v{L}",
         f"s_mov_b32 s58, {GG}",
         f"s_mov_b32 exec_lo, 0x80000000",
         f"s_mov_b32 exec_hi, 0x80000000",
         f"v_cndmask_b32 v{t0}, v{ang}, v{e32}, vcc",
         f"v_lshlrev_b32 v{t0}, 3, v{t0}",
         f"buffer_store_dwordx2 {v(TMP+16,2)}, v{t0}, s[{SWS}:{SWS+3}], s58 offen",
         f"s_mov_b64 exec, -1"]
    job.append(c)
    c = [f"v_sub_f32 v{t0}, v{YR}, v{YR+1}"]
    for k in range(2, 16): c.append(f"v_{'add' if k % 2 == 0 else 'sub'}_f32 v{t0}, v{t0}, v{YR+k}")
    c += [f"v_readlane_b32 s59, v{t0}, 32",
          f"v_mov_b32 v{ang}, 0",
          f"v_add_f32 v{t0}, s59, v{t0}",
          f"v_cvt_pk_bf16_f32 v{UNR}, v{t0}, v{ang}"]
    job.append(c)
    for q in range(4):
        c = []
        for k in range(4 * q, 4 * q + 4):
            t = TMP + 2 * (k % 4)
            c.append(f"v_mul_f32 v{t}, v{YR+k}, v{TC+k}")
            c.append(f"v_mul_f32 v{t+1}, v{YI+k}, v{TC+k}")
            c.append(f"v_fmac_f32 v{t}, v{YI+k}, v{TS+k}")
            c.append(f"v_fma_f32 v{t+1}, -v{YR+k}, v{TS+k}, v{t+1}")
            if k % 2 == 1:
                c.append(f"v_cvt_pk_bf16_f32 v{PR+k//2}, v{t-2}, v{t}")
                c.append(f"v_cvt_pk_bf16_f32 v{PI+k//2}, v{t-1}, v{t+1}")
        job.append(c)
    c = [f"{mf} {v(D3,16)}, {v(PR,4)}, {v(G1,4)}, 0",
         f"{mf} {v(D3,16)}, {v(PI,4)}, {v(G2,4)}, {v(D3,16)}",
         f"{mf} {v(D3,16)}, {v(PR+4,4)}, {v(G1+4,4)}, {v(D3,16)}",
         f"{mf} {v(D3,16)}, {v(PI+4,4)}, {v(G2+4,4)}, {v(D3,16)}"]
    job.append(c)
    c = ["s_nop 7", "s_nop 3"]
    for k in range(8): c.append(f"v_cvt_pk_bf16_f32 v{TMP+k}, v{D3+2*k}, v{D3+2*k+1}")
    c += ["s_cmp_lg_u32 s50, 0", "s_cbranch_scc1 K1_NOROW",
          "s_mov_b32 exec_lo, 0xffff", "s_mov_b32 exec_hi, 0xffff",
          f"buffer_store_dwordx4 {v(TMP,4)}, v{uvo}, s[{SWS}:{SWS+3}], s54 offen",
          f"buffer_store_dwordx4 {v(TMP+4,4)}, v{uvo}, s[{SWS}:{SWS+3}], s54 offen offset:32",
          "s_mov_b64 exec, 1",
          f"buffer_store_short v{UNR}, v{uvo}, s[{SWS}:{SWS+3}], s54 offen offset:1024",
          "s_mov_b64 exec, -1"]
    for k in range(8): c.append(f"v_mov_b32 v{TMP+k}, 0")
    c += [f"v_mov_b32 v{UNR}, 0", "K1_NOROW:"]
    job.append(c)
    assert len(job) <= 12
    merge(a, stage_groups(), pre)
    merge(a, side_loads, [])
    merge(a, stage_groups(), ga[:20])
    merge(a, stage_groups(), ga[20:])
    a("s_waitcnt vmcnt(28)\ns_barrier")
    a("s_waitcnt vmcnt(20)")
    for t in gathers: a(t)
    a("s_waitcnt lgkmcnt(0)")
    n4 = (len(tw) + 3) // 4
    for q in range(4):
        merge(a, stage_groups(), tw[q*n4:(q+1)*n4])
        a("s_waitcnt vmcnt(20)\ns_barrier")
    a("s_cmp_eq_u32 s50, 0\ns_cselect_b32 s60, 1, 0\ns_mov_b32 s27, 2")
    a.label("K1_PLOOP")
    ci = 0
    for st in range(4):
        g = stage_groups()
        for lo, hi in ((0, 4), (4, 7), (7, 10)):
            for grp in g[lo:hi]:
                for t in grp: a(t)
            if ci < len(job):
                a(f"s_cmp_eq_u32 s60, 0\ns_cbranch_scc1 K1_SK{ci}")
                for t in job[ci]: a(t)
                a.label(f"K1_SK{ci}")
                ci += 1
        a("s_waitcnt vmcnt(20)\ns_barrier")
    a(f"""
    s_mov_b32 s60, 1
    s_mov_b32 s52, 1.0
    s_mov_b32 s54, {RR}
    s_sub_u32 s27, s27, 1
    s_cmp_lg_u32 s27, 0
    s_cbranch_scc1 K1_PLOOP
    """)
    ex = [f"v_and_b32 v{t0}, 15, v{r_}",
          f"v_mul_u32_u24 v{a1}, 528, v{t0}",
          f"v_lshl_add_u32 v{a1}, v{h_}, 7, v{a1}",
          f"v_lshrrev_b32 v{t0}, 4, v{r_}",
          f"v_lshl_add_u32 v{a1}, v{t0}, 3, v{a1}",
          f"s_lshl_b32 s58, s24, 1",
          f"v_add_u32 v{a1}, s58, v{a1}",
          f"v_mul_u32_u24 v{a2}, 528, v{h_}",
          f"v_lshl_add_u32 v{a2}, v{r_}, 4, v{a2}",
          f"s_mul_i32 s58, s24, {4*528}",
          f"v_add_u32 v{a2}, s58, v{a2}",
          f"v_mul_u32_u24 v{uvo}, {ZP}, v{L}",
          f"s_mul_i32 s58, s24, {128*ZP}",
          f"s_and_b32 s59, s2, 7",
          f"s_lshl_b32 s59, s59, 9",
          f"s_add_u32 s58, s58, s59",
          f"s_lshr_b32 s59, s2, 3",
          f"s_lshl_b32 s59, s59, 4",
          f"s_add_u32 s58, s58, s59",
          f"s_add_u32 s58, s58, {ZT}",
          f"s_add_u32 s59, s58, {64*ZP}",
          f"s_add_u32 s57, s58, {128*ZP}"]
    merge(a, stage_groups(), ex)
    a("s_waitcnt vmcnt(20)\ns_barrier")
    for k in range(8):
        e1 = 16 * (k // 4) + 2 * (k % 4)
        a(f"ds_write_b16 v{a1}, v{TMP+k} offset:{16*e1}")
        a(f"ds_write_b16_d16_hi v{a1}, v{TMP+k} offset:{16*e1+16}")
    a(f"""
    s_mov_b64 exec, 1
    ds_write_b16 v{a1}, v{UNR} offset:{16*528}
    ds_write_b16_d16_hi v{a1}, v{UNR} offset:{16*528+8}
    s_mov_b64 exec, -1
    s_waitcnt vmcnt(10) lgkmcnt(0)
    s_barrier
    ds_read_b128 {v(TMP,4)}, v{a2}
    ds_read_b128 {v(TMP+4,4)}, v{a2} offset:{2*528}
    ds_read_b128 {v(TMP+8,4)}, v{a2} offset:{4*528}
    s_waitcnt vmcnt(0)
    s_barrier
    s_waitcnt lgkmcnt(0)
    buffer_store_dwordx4 {v(TMP,4)}, v{uvo}, s[{SWS}:{SWS+3}], s58 offen
    buffer_store_dwordx4 {v(TMP+4,4)}, v{uvo}, s[{SWS}:{SWS+3}], s59 offen
    s_cmp_lg_u32 s24, 3
    s_cbranch_scc1 K1_END
    s_mov_b64 exec, 1
    buffer_store_dwordx4 {v(TMP+8,4)}, v{uvo}, s[{SWS}:{SWS+3}], s57 offen
    """)
```

```python
from asmlib import *
from layout import *

def gen_k2(a):
    SWS, SRE, SIM = 8, 12, 16
    mf = "v_mfma_f32_32x32x16_bf16"
    O, NEG, S0, S1 = 0, 16, 32, 48
    S = (S0, S1); P = (64, 72); KF = (80, 88); VF = (96, 104)
    QF_, LL, SEL, IDX, L, L16, KA, NA, T0 = 112, 120, 124, 128, 129, 130, 131, 132, 133
    Z, TA, TB, TC, TS, RE, IM = 140, 156, 180, 196, 212, 32, 48
    JT = 228
    a(f"""
    s_cmp_ge_u32 s2, 256
    s_cbranch_scc1 K2_END
    s_load_dwordx2 s[{SWS}:{SWS+1}], s[0:1], {WS}
    v_lshrrev_b32 v1, 6, v0
    v_and_b32 v{L}, 63, v0
    s_mov_b32 s{SWS+2}, {WS_USED}
    v_readfirstlane_b32 s3, v1
    s_mov_b32 s{SWS+3}, 0x20000
    v_lshlrev_b32 v{L16}, 4, v{L}
    """)
    stamp(a, 0, True); stamp(a, 1)
    a(f"""
    s_and_b32 s4, s2, 7
    s_lshl_b32 s4, s4, 2
    s_bfe_u32 s5, s2, 0x20003
    s_add_u32 s4, s4, s5
    s_lshr_b32 s5, s2, 5
    s_lshl_b32 s5, s5, 3
    s_add_u32 s5, s5, s3
    s_lshl_b32 s20, s4, 18
    s_add_u32 s20, s20, {KV}
    s_lshl_b32 s21, s3, 12
    s_add_u32 s22, s20, s21
    s_lshl_b32 s23, s4, 6
    s_add_u32 s23, s23, s5
    s_lshl_b32 s23, s23, 11           ; Q offset
    s_lshl_b32 s24, s5, 16
    s_lshl_b32 s25, s4, 11
    s_add_u32 s24, s24, s25
    s_add_u32 s24, s24, {OF}          ; O offset
    s_lshr_b32 s26, s3, 1
    s_lshl_b32 s25, s2, 1
    s_add_u32 s26, s26, s25
    s_cmp_lt_u32 s3, 4
    s_cselect_b32 s27, 1, 0
    s_cmp_eq_u32 s26, 512
    s_cselect_b32 s27, 1, s27
    s_mov_b32 m0, s21
    s_waitcnt lgkmcnt(0)
    """)
    def dma():
        r = [f"buffer_load_dwordx4 v{L16}, s[{SWS}:{SWS+3}], s22 offen offset:{1024*i} lds" for i in range(4)]
        return r
    adv = ["s_add_u32 s21, s21, 0x8000", "s_and_b32 s21, s21, 0x1ffff", "s_add_u32 s22, s22, 0x8000", "s_mov_b32 m0, s21"]
    for t in dma(): a(t)
    a(f"buffer_load_dwordx4 {v(QF_,4)}, v{L16}, s[{SWS}:{SWS+3}], s23 offen")
    a(f"buffer_load_dwordx4 {v(QF_+4,4)}, v{L16}, s[{SWS}:{SWS+3}], s23 offen offset:1024")
    for t in adv: a(t)
    a("s_cmp_eq_u32 s27, 0\ns_cbranch_scc1 K2_NOJOB1")
    n_, h_, pi, t1, x0, x1 = [JT + i for i in range(6)]
    a(f"""
    v_and_b32 v{n_}, 31, v{L}
    v_lshrrev_b32 v{h_}, 5, v{L}
    v_and_b32 v{pi}, 3, v{L}
    v_bfe_u32 v{x0}, v{L}, 3, 2
    v_lshl_or_b32 v{pi}, v{x0}, 2, v{pi}
    v_bfe_u32 v{x0}, v{L}, 2, 1
    v_lshl_or_b32 v{pi}, v{x0}, 4, v{pi}        ; pi(n)
    s_and_b32 s28, s3, 1
    s_lshl_b32 s29, s28, 5
    v_or_b32 v{t1}, s29, v{pi}                  ; t1
    v_lshlrev_b32 v{x0}, 4, v{pi}
    v_lshl_or_b32 v{x0}, v{h_}, 9, v{x0}
    s_mul_i32 s30, s26, {ZP}
    s_add_u32 s31, s30, {ZT}
    """)
    for ks in range(4):
        a(f"buffer_load_dwordx4 {v(Z+4*ks,4)}, v{x0}, s[{SWS}:{SWS+3}], s31 offen offset:{1024*ks}")
    y0, y1, y2 = JT + 6, JT + 7, JT + 8
    a(f"""
    v_mov_b32 v{RE}, 0
    v_and_b32 v{y2}, 1, v{L}
    v_lshlrev_b32 v{y2}, 11, v{y2}
    v_lshl_or_b32 v{y2}, v{h_}, 30, v{y2}
    s_lshl_b32 s31, s26, 1
    s_add_u32 s31, s31, {RR}
    buffer_load_short_d16_hi v{RE}, v{y2}, s[{SWS}:{SWS+3}], s31 offen
    """)
    a.label("K2_NOJOB1")
    for st in range(2):
        for t in dma(): a(t)
        for t in adv: a(t)
    a(f"""
    v_mov_b32 v{KA}, v{L16}
    v_add_u32 v{NA}, 0x8000, v{L16}
    v_and_b32 v{T0}, 4, v{L}
    v_cmp_eq_u32 vcc, 0, v{T0}
    v_mov_b32 v{T0}, 0x3f803f80
    v_and_b32 v{T0+1}, 1, v{L}
    v_cndmask_b32 v{SEL}, 0, v{T0}, vcc
    v_xor_b32 v{SEL+2}, v{SEL}, v{T0}
    v_cmp_eq_u32 vcc, 1, v{T0+1}
    v_mov_b32 v{T0}, 0x44444444
    v_mov_b32 v{T0+1}, 0xeeeeeeee
    v_cndmask_b32 v{IDX}, v{T0}, v{T0+1}, vcc
    v_mov_b32 v{SEL+1}, v{SEL}
    v_mov_b32 v{SEL+3}, v{SEL+2}
    """)
    z2 = lambda r: f"v_pk_mov_b32 {v(r,2)}, 0, 0"
    for r in list(range(O, O + 16, 2)) + list(range(P[1], P[1] + 8, 2)) + [VF[1] + 4, VF[1] + 6, LL, LL + 2]:
        a(f"v_mov_b64 {v(r,2)}, 0")
    a("s_cmp_eq_u32 s27, 0\ns_cbranch_scc1 K2_NOJOB2")
    hf, tf, x5 = JT + 10, JT + 11, JT + 12
    W = JT + 14
    a(f"""
    v_cvt_f32_u32 v{tf}, v{t1}
    v_cvt_f32_u32 v{hf}, v{h_}
    v_mul_f32 v{x0}, {f2u(1/64)}, v{tf}
    v_mul_f32 v{x1}, 4.0, v{hf}
    v_mul_f32 v{x1}, v{x0}, v{x1}
    v_mul_f32 v{x5}, {f2u(5.0)}, v{x0}
    """)
    for k in range(16):
        o = k & 1
        a(f"v_cos_f32 v{W+o}, v{x1}")
        a(f"v_sin_f32 v{W+2+o}, v{x1}")
        if k < 15: a(f"v_add_f32 v{x1}, v{x1}, v{x5 if k % 4 == 3 else x0}")
        if o:
            d = TA + 6 * (k // 4) + (k % 4) // 2
            a(f"v_cvt_pk_bf16_f32 v{d+2}, v{W}, v{W+1}")
            a(f"v_cvt_pk_bf16_f32 v{d+4}, v{W+2}, v{W+3}")
            a(f"v_xor_b32 v{d}, 0x80008000, v{d+4}")
    a(f"""
    v_mul_f32 v{hf}, {f2u(16.0)}, v{hf}
    v_mul_f32 v{x0}, {f2u(1/2048)}, v{tf}
    v_mul_f32 v{x1}, v{x0}, v{hf}
    v_mov_b32 v{RE+1}, 0
    """)
    for r in range(RE + 2, RE + 16, 2): a(f"v_mov_b64 {v(r,2)}, 0")
    for k in range(16):
        a(f"v_cos_f32 v{TC+k}, v{x1}")
        a(f"v_sin_f32 v{TS+k}, v{x1}")
        if k < 15: a(f"v_add_f32 v{x1}, v{x1}, v{x0}")
    a(f"""
    v_cvt_f32_u32 v{x0}, v{n_}
    v_mul_f32 v{x0}, {f2u(1/32)}, v{x0}
    v_mul_f32 v{x1}, v{x0}, v{hf}
    """)
    for k in range(16):
        o = k & 1
        a(f"v_cos_f32 v{W+o}, v{x1}")
        a(f"v_sin_f32 v{W+2+o}, v{x1}")
        if k < 15: a(f"v_add_f32 v{x1}, v{x1}, v{x0}")
        if o:
            a(f"v_cvt_pk_bf16_f32 v{TB+k//2}, v{W}, v{W+1}")
            a(f"v_cvt_pk_bf16_f32 v{TB+8+k//2}, v{W+2}, v{W+3}")
    a(f"""
    v_lshlrev_b32 v{y0}, 7, v{n_}
    v_lshl_or_b32 v{y0}, v{h_}, 5, v{y0}
    s_lshl_b32 s28, s28, 6
    s_add_u32 s30, s30, s28
    s_add_u32 s30, s30, {YT}
    s_waitcnt vmcnt({2+5+8})
    """)
    stamp(a, 2)
    a("s_barrier")
    stamp(a, 3)
    a("s_waitcnt vmcnt(8)")
    for ks in range(4):
        a(f"{mf} {v(RE,16)}, {v(Z+4*ks,4)}, {v(TA+6*ks+2,4)}, {v(RE,16)}")
        a(f"{mf} {v(IM,16)}, {v(Z+4*ks,4)}, {v(TA+6*ks,4)}, {'0' if ks == 0 else v(IM,16)}")
    PR, PI = Z, Z + 8
    for k in range(0, 16, 2):
        t = JT + 10 + 4 * ((k // 2) % 2)
        a(f"v_pk_mul_f32 {v(t,2)}, {v(RE+k,2)}, {v(TC+k,2)}")
        a(f"v_pk_mul_f32 {v(t+2,2)}, {v(IM+k,2)}, {v(TC+k,2)}")
        a(f"v_pk_fma_f32 {v(t,2)}, {v(IM+k,2)}, {v(TS+k,2)}, {v(t,2)}")
        a(f"v_pk_fma_f32 {v(t+2,2)}, {v(RE+k,2)}, {v(TS+k,2)}, {v(t+2,2)} neg_lo:[1,0,0] neg_hi:[1,0,0]")
        a(f"v_cvt_pk_bf16_f32 v{PR+k//2}, v{t}, v{t+1}")
        a(f"v_cvt_pk_bf16_f32 v{PI+k//2}, v{t+2}, v{t+3}")
        if k == 6:
            a(f"{mf} {v(TA,16)}, {v(PR,4)}, {v(TB,4)}, 0")
            a(f"{mf} {v(TA,16)}, {v(PI,4)}, {v(TB+8,4)}, {v(TA,16)}")
    a(f"{mf} {v(TA,16)}, {v(PR+4,4)}, {v(TB+4,4)}, {v(TA,16)}")
    a(f"{mf} {v(TA,16)}, {v(PI+4,4)}, {v(TB+12,4)}, {v(TA,16)}")
    for k in range(8): a(f"v_cvt_pk_bf16_f32 v{TC+k}, v{TA+2*k}, v{TA+2*k+1}")
    a(f"""
    buffer_store_dwordx4 {v(TC,4)}, v{y0}, s[{SWS}:{SWS+3}], s30 offen
    buffer_store_dwordx4 {v(TC+4,4)}, v{y0}, s[{SWS}:{SWS+3}], s30 offen offset:16
    s_add_u32 s30, s30, 4096
    s_cmp_lg_u32 s28, 0
    s_cbranch_scc1 K2_START
    s_mov_b64 exec, 1
    buffer_store_short v{TC}, v{y0}, s[{SWS}:{SWS+3}], s30 offen
    s_mov_b64 exec, -1
    s_branch K2_START
    """)
    a.label("K2_NOJOB2")
    a("s_waitcnt vmcnt(8)")
    stamp(a, 2)
    a("s_barrier")
    stamp(a, 3)
    a.label("K2_START")
    rdK = lambda b, base, tile: [f"ds_read_b128 {v(KF[b]+4*j,4)}, v{base} offset:{tile*4096+j*1024}" for j in range(2)]
    rdV = lambda b, base, tile: [f"ds_read_b128 {v(VF[b]+4*j,4)}, v{base} offset:{tile*4096+2048+j*1024}" for j in range(2)]
    def qk(b, j, c): return f"{mf} {v(S[b],16)}, {v(KF[b]+4*j,4)}, {v(QF_+4*j,4)}, {c if j == 0 else v(S[b],16)}"
    def pv(b, j): return f"{mf} {v(O,16)}, {v(VF[b]+4*j,4)}, {v(P[b]+4*j,4)}, {v(O,16)}"
    def lsum(b): return f"v_smfmac_f32_16x16x64_bf16 {v(LL,4)}, {v(SEL,4)}, {v(P[b],8)}, v{IDX}"
    def rowmax(src, acc, first):
        r = []
        if first: r.append(f"v_max_f32 v{acc}, v{src}, v{src+1}")
        for k in range(2 if first else 0, 16, 2): r.append(f"v_max3_f32 v{acc}, v{src+k}, v{src+k+1}, v{acc}")
        return r
    def setneg(acc):
        r = [f"v_mov_b32 v{acc+1}, v{acc}", f"v_permlane32_swap_b32 v{acc}, v{acc+1}", f"v_max_f32 v{acc}, v{acc}, v{acc+1}",
             f"v_sub_f32 v{NEG}, 0, v{acc}", f"v_sub_f32 v{NEG+1}, 0, v{acc}"]
        for k in range(2, 16, 2): r.append(f"v_mov_b64 {v(NEG+k,2)}, {v(NEG,2)}")
        return r
    for t in rdK(0, KA, 0) + rdK(1, KA, 1) + rdV(0, KA, 0): a(t)
    a("s_waitcnt lgkmcnt(4)")
    a(qk(0, 0, "0")); a(qk(0, 1, None))
    for t in rowmax(S0, T0, True) + setneg(T0): a(t)
    a(qk(0, 0, v(NEG, 16))); a(qk(0, 1, None))
    a("s_mov_b32 s33, 0\ns_nop 7")
    stamp(a, 4)
    a(".p2align 6")
    a.label("K2_LOOP")
    ex = lambda b, k: f"v_exp_f32 v{S[b]+k}, v{S[b]+k}"
    cv = lambda b, k: f"v_cvt_pk_bf16_f32 v{P[b]+k}, v{S[b]+2*k}, v{S[b]+2*k+1}"
    for i in range(8):
        b = i & 1
        rk = rdK(b, KA, i + 2) if i < 6 else rdK(b, NA, i - 6)
        rv = rdV(b ^ 1, KA, i + 1) if i < 7 else rdV(b ^ 1, NA, 0)
        a("s_waitcnt lgkmcnt(0)")
        a(qk(b ^ 1, 0, v(NEG, 16)))
        if i == 6:
            a("s_waitcnt vmcnt(0)\ns_barrier")
        a(rk[0]); a(ex(b, 0)); a(rk[1]); a(ex(b, 1)); a(rv[0]); a(ex(b, 2)); a(ex(b, 3))
        a(pv(b ^ 1, 1))
        a(rv[1])
        a(ex(b, 4)); a(cv(b, 0)); a(ex(b, 5)); a(cv(b, 1)); a(ex(b, 6)); a(ex(b, 7)); a(cv(b, 2))
        a(qk(b ^ 1, 1, None))
        if i == 6:
            a("s_cmp_ge_u32 s33, 5\ns_cbranch_scc1 K2_NODMA")
            for t in dma() + adv: a(t)
            a.label("K2_NODMA")
        a(ex(b, 8)); a(cv(b, 3)); a(ex(b, 9)); a(ex(b, 10))
        a(lsum(b ^ 1))
        a(ex(b, 11)); a(cv(b, 4))
        a(pv(b, 0))
        a(ex(b, 12)); a(cv(b, 5)); a(ex(b, 13)); a(ex(b, 14))
        if i == 7:
            a(f"v_mov_b32 v{KA}, v{NA}")
            a(f"v_add_u32 v{NA}, 0x8000, v{NA}")
            a("s_add_u32 s33, s33, 1\ns_cmp_lt_u32 s33, 8")
        a(ex(b, 15)); a(cv(b, 6))
        if i == 7: a(f"v_and_b32 v{NA}, 0x1ffff, v{NA}")
        a(cv(b, 7))
    a("s_cbranch_scc1 K2_LOOP")
    a(pv(1, 1)); a(lsum(1))
    stamp(a, 5)
    a(f"v_mov_b64 {v(T0+1,2)}, 0" if (T0 + 1) % 2 == 0 else "")
    a(f"s_mov_b32 s34, {f2u(2.0**96)}")
    a(f"v_add_f32 v{T0}, v{LL}, v{LL+1}")
    for k in range(0, 16, 2): a(f"v_pk_fma_f32 {v(T0+1,2)}, {v(O+k,2)}, 0, {v(T0+1,2)}")
    a(f"""
    v_add_f32 v{T0+1}, v{T0+1}, v{T0+2}
    v_add_f32 v{T0+1}, v{T0+1}, v{T0}
    v_cmp_ngt_f32 vcc, s34, v{T0+1}
    s_cbranch_vccnz K2_SLOW
    """)
    a.label("K2_EPI")
    a(f"v_rcp_f32 v{T0+1}, v{T0}")
    a(f"v_mov_b32 v{T0+2}, v{T0+1}")
    for k in range(0, 16, 2):
        a(f"v_pk_mul_f32 {v(O+k,2)}, {v(O+k,2)}, {v(T0+1,2)}")
        a(f"v_cvt_pk_bf16_f32 v{P[0]+k//2}, v{O+k}, v{O+k+1}")
        if k == 6: a(f"buffer_store_dwordx4 {v(P[0],4)}, v{L16}, s[{SWS}:{SWS+3}], s24 offen")
    a(f"buffer_store_dwordx4 {v(P[0]+4,4)}, v{L16}, s[{SWS}:{SWS+3}], s24 offen offset:1024")
    if STAMPS: a("s_waitcnt vmcnt(0)")
    stamp(a, 6); stamp(a, 7, True)
    stamp_flush(a, 8, SWS, 1, 3)
    a.label("K2_END")
    a("s_endpgm")
    a.label("K2_SLOW")
    gl = lambda r, off: f"buffer_load_dwordx4 {v(r,4)}, v{L16}, s[{SWS}:{SWS+3}], s22 offen offset:{off}"
    a(f"""
    s_waitcnt lgkmcnt(0)
    v_mov_b32 v{T0}, 0xff800000
    s_mov_b32 s22, s20
    s_mov_b32 s33, 0
    """)
    a.label("K2_SL1")
    a(gl(KF[0], 0)); a(gl(KF[0] + 4, 1024))
    a("s_add_u32 s22, s22, 4096\ns_waitcnt vmcnt(0)")
    a(qk(0, 0, "0")); a(qk(0, 1, None))
    for t in rowmax(S0, T0, False): a(t)
    a("s_add_u32 s33, s33, 1\ns_cmp_lt_u32 s33, 64\ns_cbranch_scc1 K2_SL1")
    for t in setneg(T0): a(t)
    for r in list(range(O, O + 16, 2)) + [LL, LL + 2]: a(f"v_mov_b64 {v(r,2)}, 0")
    a("s_mov_b32 s22, s20\ns_mov_b32 s33, 0")
    a.label("K2_SL2")
    a(gl(KF[0], 0)); a(gl(KF[0] + 4, 1024)); a(gl(VF[0], 2048)); a(gl(VF[0] + 4, 3072))
    a("s_add_u32 s22, s22, 4096\ns_waitcnt vmcnt(0)")
    a(qk(0, 0, v(NEG, 16))); a(qk(0, 1, None))
    for k in range(16): a(ex(0, k))
    for k in range(8): a(cv(0, k))
    a(pv(0, 0)); a(pv(0, 1)); a(lsum(0))
    a("s_add_u32 s33, s33, 1\ns_cmp_lt_u32 s33, 64\ns_cbranch_scc1 K2_SL2")
    a(f"s_nop 7\ns_nop 7\nv_add_f32 v{T0}, v{LL}, v{LL+1}")
    a("s_branch K2_EPI")
```

```python
from asmlib import *
from layout import *

def gen_k3(a):
    SWS, SWO, SOUT = 8, 12, 16
    mf = "v_mfma_f32_32x32x16_bf16"
    A0, A1, Y, G = 0, 16, 32, 48
    WF = lambda b, t: 52 + 8 * b + 4 * t
    L, L16, WO, WA, WB, YA, OA, T0 = 68, 69, 70, 71, 72, 73, 74, 75
    OFR = lambda ks: 128 + 4 * ks
    a(f"""
    s_cmp_ge_u32 s2, 256
    s_cbranch_scc1 K3_END
    s_load_dwordx2 s[{SWS}:{SWS+1}], s[0:1], {WS}
    s_load_dwordx2 s[{SWO}:{SWO+1}], s[0:1], {B_WO}
    s_load_dwordx2 s[{SOUT}:{SOUT+1}], s[0:1], {OUT}
    v_lshrrev_b32 v1, 6, v0
    v_and_b32 v{L}, 63, v0
    s_mov_b32 s{SWS+2}, {WS_USED}
    v_readfirstlane_b32 s3, v1
    s_mov_b32 s{SWS+3}, 0x20000
    s_mov_b32 s{SWO+2}, 0x200000
    s_mov_b32 s{SWO+3}, 0x20000
    s_mov_b32 s{SOUT+2}, 0x400000
    s_mov_b32 s{SOUT+3}, 0x20000
    v_lshlrev_b32 v{L16}, 4, v{L}
    """)
    stamp(a, 0, True); stamp(a, 1)
    a(f"""
    s_and_b32 s4, s2, 3
    s_lshl_b32 s4, s4, 2
    s_bfe_u32 s5, s2, 0x20003
    s_add_u32 s4, s4, s5
    s_bfe_u32 s5, s2, 0x10002
    s_lshl_b32 s5, s5, 3
    s_lshr_b32 s6, s2, 5
    s_add_u32 s5, s5, s6
    s_and_b32 s6, s3, 3               ; tt
    s_lshr_b32 s7, s3, 2              ; kh
    v_lshrrev_b32 v{T0}, 3, v{L}
    v_and_b32 v{T0+1}, 7, v{L}
    v_bfe_u32 v{T0+2}, v{L}, 4, 1
    v_lshlrev_b32 v{T0+2}, 2, v{T0+2}
    v_xor_b32 v{T0+1}, v{T0+1}, v{T0+2}
    v_lshlrev_b32 v{T0+1}, 4, v{T0+1}
    v_lshl_or_b32 v{WO}, v{T0}, 11, v{T0+1}
    s_lshl_b32 s20, s7, 20
    s_lshl_b32 s21, s6, 16
    s_add_u32 s20, s20, s21
    s_lshl_b32 s21, s5, 7
    s_add_u32 s20, s20, s21
    s_lshl_b32 s21, s7, 16
    s_lshl_b32 s22, s6, 12
    s_add_u32 s21, s21, s22
    s_lshl_b32 s22, s4, 2
    s_add_u32 s22, s22, s6
    s_lshl_b32 s23, s22, 16
    s_lshl_b32 s24, s7, 15
    s_add_u32 s23, s23, s24
    s_add_u32 s23, s23, {OF}
    s_waitcnt lgkmcnt(0)
    """)
    for c in range(4):
        for i in range(4):
            a(f"s_mov_b32 m0, s21")
            a(f"s_add_u32 s21, s21, {1024 if i < 3 else 16384 - 3072}")
            a(f"buffer_load_dwordx4 v{WO}, s[{SWO}:{SWO+3}], s20 offen lds")
            a(f"s_add_u32 s20, s20, {16384 if i < 3 else 262144 - 3*16384}")
        for i in range(8):
            a(f"buffer_load_dwordx4 {v(OFR(8*c+i),4)}, v{L16}, s[{SWS}:{SWS+3}], s23 offen offset:{1024*(i%4)}")
            if i % 4 == 3: a("s_add_u32 s23, s23, 4096")
    a(f"""
    v_lshrrev_b32 v{T0}, 5, v{L}              ; h
    v_bfe_u32 v{T0+1}, v{L}, 2, 2             ; rr
    v_lshl_or_b32 v{T0+1}, v{T0}, 2, v{T0+1}
    v_lshlrev_b32 v{WA}, 7, v{T0+1}
    v_bfe_u32 v{T0+1}, v{L}, 3, 1
    v_xor_b32 v{T0+1}, s7, v{T0+1}
    v_lshl_or_b32 v{WA}, v{T0+1}, 6, v{WA}
    v_and_b32 v{T0+1}, 1, v{L}
    v_lshl_or_b32 v{WA}, v{T0+1}, 5, v{WA}
    v_bfe_u32 v{T0+1}, v{L}, 4, 1
    v_lshl_or_b32 v{WA}, v{T0+1}, 4, v{WA}
    v_bfe_u32 v{T0+1}, v{L}, 1, 1
    v_lshl_or_b32 v{WA}, v{T0+1}, 3, v{WA}
    s_lshl_b32 s24, s7, 16
    v_add_u32 v{WA}, s24, v{WA}
    v_xor_b32 v{WB}, 64, v{WA}
    v_and_b32 v{T0+1}, 31, v{L}
    s_lshl_b32 s24, s22, 5
    v_add_u32 v{T0+1}, s24, v{T0+1}           ; t
    s_lshl_b32 s25, s5, 6
    s_lshl_b32 s26, s7, 5
    s_add_u32 s25, s25, s26
    v_lshlrev_b32 v{T0+2}, 4, v{T0}
    v_add_u32 v{T0+2}, s25, v{T0+2}           ; c (r=0)
    v_lshlrev_b32 v{OA}, 11, v{T0+1}
    v_lshl_or_b32 v{OA}, v{T0+2}, 1, v{OA}
    v_lshlrev_b32 v{T0+3}, 3, v{T0+1}
    s_mov_b32 s27, {GG}
    s_mov_b32 s28, {YP}
    s_mov_b32 s29, {YT}
    s_cmp_lt_u32 s5, 8
    s_cbranch_scc1 K3_LOW
    v_sub_u32 v{T0+1}, 2048, v{T0+1}
    v_sub_u32 v{T0+2}, 1024, v{T0+2}
    s_mov_b32 s28, {-YP}
    K3_LOW:
    v_mul_u32_u24 v{YA}, {YP}, v{T0+2}
    v_lshl_add_u32 v{YA}, v{T0+1}, 1, v{YA}
    buffer_load_dwordx2 {v(G,2)}, v{T0+3}, s[{SWS}:{SWS+3}], s27 offen
    """)
    for r in range(0, 16, 2): a(f"v_mov_b64 {v(Y+r,2)}, 0")
    def reads(ks, b):
        return [f"ds_read_b64_tr_b16 {v(WF(b,t)+2*sec,2)}, v{WA+t} offset:{ks*2048+sec*1024}" for t in range(2) for sec in range(2)]
    issued = 49
    pos_w = lambda c: 12 * c + 4
    pos_o = lambda ks: 12 * (ks // 8) + 4 + ks % 8 + 1
    a(f"s_waitcnt vmcnt({issued - pos_w(0)})")
    stamp(a, 2)
    a("s_barrier")
    stamp(a, 3)
    for t in reads(0, 0): a(t)
    ny = 0
    for ks in range(32):
        b = ks & 1
        if ks % 8 == 7 and ks < 31:
            a(f"s_waitcnt vmcnt({issued - pos_w(ks // 8 + 1)})\ns_barrier")
        if ks < 31:
            for t in reads(ks + 1, b ^ 1): a(t)
        a(f"s_waitcnt vmcnt({issued - pos_o(ks)}) lgkmcnt({4 if ks < 31 else 0})")
        c = "0" if ks == 0 else None
        a(f"{mf} {v(A0,16)}, {v(WF(b,0),4)}, {v(OFR(ks),4)}, {c or v(A0,16)}")
        a(f"{mf} {v(A1,16)}, {v(WF(b,1),4)}, {v(OFR(ks),4)}, {c or v(A1,16)}")
        if 4 <= ks < 12:
            for _ in range(2):
                a(f"buffer_load_short_d16_hi v{Y+ny}, v{YA}, s[{SWS}:{SWS+3}], s29 offen")
                a("s_add_u32 s29, s29, s28")
                ny += 1; issued += 1
    stamp(a, 4)
    a(f"""
    s_lshl_b32 s24, s3, 12
    s_add_u32 s24, s24, 0x20000
    v_add_u32 v{T0}, s24, v{L16}
    v_xor_b32 v{T0+1}, 0x4000, v{T0}
    s_waitcnt vmcnt(0)
    v_mov_b32 v{G+2}, v{G+1}
    v_mov_b32 v{G+3}, v{G+1}
    v_mov_b32 v{G+1}, v{G}
    """)
    for r in range(0, 16, 2): a(f"v_pk_mul_f32 {v(Y+r,2)}, {v(Y+r,2)}, {v(G,2)}")
    for i in range(4): a(f"ds_write_b128 v{T0}, {v(A1+4*i,4)} offset:{1024*i}")
    for r in range(0, 16, 2): a(f"v_pk_fma_f32 {v(Y+r,2)}, {v(A0+r,2)}, {v(G+2,2)}, {v(Y+r,2)}")
    a("s_waitcnt lgkmcnt(0)\ns_barrier")
    for i in range(4): a(f"ds_read_b128 {v(A1+4*i,4)}, v{T0+1} offset:{1024*i}")
    for i in range(4):
        a(f"s_waitcnt lgkmcnt({3-i})")
        for r in range(4 * i, 4 * i + 4, 2):
            a(f"v_pk_fma_f32 {v(Y+r,2)}, {v(A1+r,2)}, {v(G+2,2)}, {v(Y+r,2)}")
            a(f"v_cvt_pk_bf16_f32 v{A0+r//2}, v{Y+r}, v{Y+r+1}")
        if i % 2: a(f"buffer_store_dwordx4 {v(A0+2*(i-1),4)}, v{OA}, s[{SOUT}:{SOUT+3}], 0 offen offset:{8*(i-1)}")
    stamp(a, 5)
    if STAMPS: a("s_waitcnt vmcnt(0)")
    stamp(a, 6); stamp(a, 7, True)
    stamp_flush(a, 8, SWS, 2, 3, vt=120)
    a.label("K3_END")
    a("s_endpgm")
```

```python
QF = 0
KV = 4 << 20
ZT = 12 << 20
ZP = 4224
RR = 15 << 20
GG = (15 << 20) + 65536
FLG = (15 << 20) + 131072
OF = 16 << 20
YT = 20 << 20
YP = 4224
WS_USED = 26 << 20
A_X, A_SRE, A_SIM, A_HRE, A_HIM, B_X, B_WQKV, B_WO, GATE, OUT, DBG, WS = [8 * i for i in range(12)]
```

```python
import sys, os
sys.path.insert(0, os.path.dirname(__file__))
from asmlib import *
NAME = "gated_mix__spectral_fnet__mha_block__prompt"
def build(kernels, path):
    ref = open(f"cdna_kernels/{NAME}.s.ref").read().split("\n")
    head = [l for l in ref if l.startswith(";") and "@launch" not in l and "Override launch" not in l and "Harness parses" not in l and not l.startswith(";  v1")]
    out = "\n".join(head) + "\n"
    for lab, fn, grid, block, lds, nv in kernels:
        out += f"; @launch kernel={lab} grid=({grid},1,1) block=({block},1,1) lds={lds}\n"
    out += '.amdgcn_target "amdgcn-amd-amdhsa--gfx950"\n.text\n'
    seen = []
    for lab, fn, grid, block, lds, nv in kernels:
        if lab in [x[0] for x in seen]: continue
        seen.append((lab, nv))
        a = Asm(); fn(a)
        out += f".globl {lab}\n.p2align 8\n.type {lab},@function\n{lab}:\n" + a.finish()
        print(lab, "auto pads:", a.npad, file=sys.stderr)
    out += '.section .rodata,"a"\n'
    for lab, nv in seen:
        out += f""".p2align 6
.amdhsa_kernel {lab}
  .amdhsa_next_free_vgpr {nv}
  .amdhsa_next_free_sgpr 96
  .amdhsa_accum_offset {min(256,(nv+3)//4*4)}
  .amdhsa_group_segment_fixed_size 0
  .amdhsa_kernarg_size 96
  .amdhsa_user_sgpr_count 2
  .amdhsa_user_sgpr_kernarg_segment_ptr 1
  .amdhsa_system_sgpr_workgroup_id_x 1
.end_amdhsa_kernel
"""
    open(path, "w").write(out)
if __name__ == "__main__":
    from k1 import gen_k1
    from k2 import gen_k2
    from k3 import gen_k3
    ks = [("k1_kernel", lambda a: gen_k1(a, side=True), 256, 512, 163840, 256),
          ("k2_kernel", gen_k2, 256, 512, 131072, 256),
          ("k3_kernel", gen_k3, 256, 512, 163840, 256)]
    build(ks, sys.argv[1] if len(sys.argv) > 1 else f"cdna_kernels/{NAME}.s")
```

```python
from asmlib import *
from layout import *
import math

def merge(a, groups, fill):
    n = len(groups); k = 0
    for i, g in enumerate(groups):
        for t in g: a(t)
        e = (len(fill) * (i + 1)) // n
        for t in fill[k:e]: a(t)
        k = e

def gen_k1(a, side=True):
    SX, SW, SWS, SG = 8, 12, 16, 20
    a(f"""
    s_cmp_ge_u32 s2, 256
    s_cbranch_scc1 K1_END
    s_load_dwordx2 s[{SX}:{SX+1}], s[0:1], {A_X}
    s_load_dwordx2 s[{SW}:{SW+1}], s[0:1], {B_WQKV}
    s_load_dwordx2 s[{SWS}:{SWS+1}], s[0:1], {WS}
    s_load_dwordx2 s[{SG}:{SG+1}], s[0:1], {GATE}
    v_lshrrev_b32 v1, 6, v0
    v_and_b32 v99, 63, v0
    s_mov_b32 s{SX+2}, 0x400000
    v_readfirstlane_b32 s3, v1
    s_mov_b32 s{SX+3}, 0x20000
    s_mov_b32 s{SW+2}, 0x600000
    s_mov_b32 s{SW+3}, 0x20000
    s_mov_b32 s{SWS+2}, {WS_USED}
    s_mov_b32 s{SWS+3}, 0x20000
    s_mov_b32 s{SG+2}, 0x800
    s_mov_b32 s{SG+3}, 0x20000
    s_and_b32 s4, s2, 1
    s_lshl_b32 s4, s4, 3
    s_bfe_u32 s5, s2, 0x30003
    s_add_u32 s4, s4, s5
    s_bfe_u32 s5, s2, 0x20001
    s_lshl_b32 s5, s5, 2
    s_lshr_b32 s6, s2, 6
    s_add_u32 s5, s5, s6
    s_cmp_ge_u32 s3, 4
    s_cbranch_scc1 K1_PROD
    """)
    L = 99
    stamp(a, 0, True); stamp(a, 1)
    XF = lambda b, tt: 96 + 4 + 8 * b + 4 * tt
    WF = lambda b, sg: 116 + 12 * b + 4 * sg
    XA = 140; WA = 144; T0 = 146
    a(f"""
    s_setprio 2
    s_and_b32 s24, s3, 1
    s_lshr_b32 s25, s3, 1
    v_and_b32 v{T0}, 31, v{L}       ; r
    v_lshrrev_b32 v{T0+1}, 5, v{L}  ; h
    v_bfe_u32 v{T0+2}, v{L}, 1, 3   ; (r>>1)&7
    v_xor_b32 v{T0+2}, v{T0+2}, v{T0+1}
    v_lshlrev_b32 v{T0+2}, 4, v{T0+2}
    v_lshl_or_b32 v{T0+2}, v{T0}, 7, v{T0+2}
    s_lshl_b32 s26, s24, 13
    v_add_u32 v{XA}, s26, v{T0+2}
    v_xor_b32 v{XA+1}, 32, v{XA}
    v_xor_b32 v{XA+2}, 64, v{XA}
    v_xor_b32 v{XA+3}, 96, v{XA}
    ; W address
    v_bfe_u32 v{T0+2}, v{L}, 2, 2   ; rr
    v_lshl_or_b32 v{T0+2}, v{T0+1}, 3, v{T0+2}
    v_lshlrev_b32 v{T0+2}, 7, v{T0+2}
    v_bfe_u32 v{T0+3}, v{L}, 3, 1   ; (rr>>1)&1
    v_xor_b32 v{T0+3}, s25, v{T0+3}
    v_lshl_or_b32 v{T0+2}, v{T0+3}, 6, v{T0+2}
    v_bfe_u32 v{T0+3}, v{L}, 4, 1   ; g2
    v_lshl_or_b32 v{T0+2}, v{T0+3}, 5, v{T0+2}
    v_and_b32 v{T0+3}, 3, v{L}
    v_lshl_or_b32 v{T0+2}, v{T0+3}, 3, v{T0+2}
    v_add_u32 v{WA}, 0x10000, v{T0+2}
    v_add_u32 v{WA+1}, 0x1c000, v{T0+2}
    v_lshlrev_b32 v{T0}, 4, v{L}
    v_and_b32 v{T0+1}, 0x330, v{T0}
    v_bfe_u32 v{T0+2}, v{L}, 2, 1
    v_lshl_or_b32 v{T0+1}, v{T0+2}, 7, v{T0+1}
    v_bfe_u32 v{T0+2}, v{L}, 3, 1
    v_lshl_or_b32 v{T0+1}, v{T0+2}, 6, v{T0+1}
    """)
    for i in range(96): a(f"v_mov_b32 v{i}, 0")
    def reads(slot, st, b):
        r = []
        for tt in range(2):
            r.append(f"ds_read_b128 {v(XF(b,tt),4)}, v{XA+st} offset:{slot*16384 + tt*4096}")
        for sg in range(3):
            for sec in range(2):
                r.append(f"ds_read_b64_tr_b16 {v(WF(b,sg)+2*sec,2)}, v{WA+(slot>>1)} offset:{(slot&1)*24576 + sg*8192 + st*2048 + sec*512}")
        return [[r[0], r[2], r[3]], [r[1], r[4], r[5]], [r[6], r[7]]]
    def mfmas(b):
        m = []
        for sg in range(3):
            for tt in range(2):
                acc = v(16 * (tt * 3 + sg), 16)
                if sg < 2: m.append(f"v_mfma_f32_32x32x16_bf16 {acc}, {v(WF(b,sg),4)}, {v(XF(b,tt),4)}, {acc}")
                else:      m.append(f"v_mfma_f32_32x32x16_bf16 {acc}, {v(XF(b,tt),4)}, {v(WF(b,sg),4)}, {acc}")
        return m
    a("s_mov_b32 s27, 4")
    stamp(a, 2)
    a("s_barrier")
    stamp(a, 3)
    for g in reads(0, 0, 0):
        for t in g: a(t)
    a(".p2align 6")
    a.label("K1_CLOOP")
    for slot in range(4):
        for st in range(4):
            b = st & 1
            m = mfmas(b)
            nslot, nst = (slot, st + 1) if st < 3 else ((slot + 1) & 3, 0)
            rd = reads(nslot, nst, b ^ 1)
            a("s_waitcnt lgkmcnt(0)")
            a(m[0])
            if st == 3:
                if slot == 3:
                    a("s_sub_u32 s27, s27, 1")
                    a("s_cmp_eq_u32 s27, 0")
                    a("s_cbranch_scc1 K1_CTAIL")
                a("s_barrier")
            for i in range(3):
                for t in rd[i]: a(t)
                a(m[i + 1])
            a(m[4])
            a(m[5])
    a("s_branch K1_CLOOP")
    a.label("K1_CTAIL")
    for t in mfmas(1)[1:]: a(t)
    stamp(a, 4)
    qs = math.log2(math.e) / math.sqrt(32.0)
    a(f"""
    s_lshl_b32 s28, s5, 1
    s_add_u32 s28, s28, s25
    s_lshl_b32 s28, s28, 6
    s_lshl_b32 s29, s4, 2
    s_add_u32 s28, s28, s29
    s_lshl_b32 s29, s24, 1
    s_add_u32 s28, s28, s29
    s_lshl_b32 s29, s28, 11          ; Q offset
    s_lshl_b32 s30, s28, 12
    s_add_u32 s30, s30, {KV}
    s_add_u32 s31, s30, 4096
    s_mov_b32 s32, {f2u(qs)}
    """)
    PK = 100
    n = 0
    for sg in range(3):
        for tt in range(2):
            base = 16 * (tt * 3 + sg)
            pk = PK + 8 * (n % 4); n += 1
            if sg == 0:
                for i in range(16): a(f"v_mul_f32 v{base+i}, s32, v{base+i}")
            for j in range(2):
                for i in range(4):
                    a(f"v_cvt_pk_bf16_f32 v{pk+4*j+i}, v{base+8*j+2*i}, v{base+8*j+2*i+1}")
                if sg == 0: so, off = 29, tt * 2048 + j * 1024
                else: so, off = 30 + tt, (sg - 1) * 2048 + j * 1024
                a(f"buffer_store_dwordx4 {v(pk+4*j,4)}, v{T0+(sg==1)}, s[{SWS}:{SWS+3}], s{so} offen offset:{off}")
    stamp(a, 5)
    if STAMPS: a("s_waitcnt vmcnt(0)")
    stamp(a, 6); stamp(a, 7, True)
    stamp_flush(a, 8, SWS, 0, 3)
    a("s_endpgm")

    a(".p2align 6")
    a.label("K1_PROD")
    VO = 100
    T = 88
    a(f"""
    s_sub_u32 s24, s3, 4             ; p
    v_lshrrev_b32 v{T}, 3, v{L}      ; i>>3
    v_and_b32 v{T+1}, 7, v{L}        ; i&7
    v_lshrrev_b32 v{T+2}, 4, v{L}    ; i>>4
    v_xor_b32 v{T+3}, v{T+1}, v{T+2}
    v_lshlrev_b32 v{T+3}, 4, v{T+3}
    v_lshl_or_b32 v{T+3}, v{T}, 11, v{T+3}
    s_lshl_b32 s25, s4, 18           ; rt*128*2048
    s_lshl_b32 s26, s24, 16          ; p*32*2048
    s_add_u32 s25, s25, s26
    v_add_u32 v{VO}, s25, v{T+3}
    v_xor_b32 v{VO+1}, 64, v{VO}
    v_add_u32 v{VO+1}, {16384-1024}, v{VO+1}
    v_add_u32 v{VO+2}, {2*(16384-1024)}, v{VO}
    v_add_u32 v{VO+3}, {2*(16384-1024)}, v{VO+1}
    ; W
    v_and_b32 v{T+2}, 1, v{T+2}
    v_lshlrev_b32 v{T+2}, 2, v{T+2}
    v_xor_b32 v{T+3}, v{T+1}, v{T+2}
    v_lshlrev_b32 v{T+3}, 4, v{T+3}
    s_movk_i32 s26, 6144
    v_mad_u32_u24 v{T+3}, v{T}, s26, v{T+3}
    s_lshl_b32 s27, s5, 7            ; cg*128
    s_mul_i32 s28, s24, 6
    """)
    for u in range(6):
        a(f"""
        s_add_u32 s29, s28, {u}
        s_and_b32 s30, s29, 7
        s_mul_i32 s30, s30, 49152
        s_lshr_b32 s29, s29, 3
        s_lshl_b32 s29, s29, 11
        s_add_u32 s29, s29, s30
        s_add_u32 s29, s29, s27
        s_sub_u32 s29, s29, {1024*(u%3)}
        v_add_u32 v{VO+4+u}, s29, v{T+3}
        """)
    a(f"""
    s_mov_b32 s40, 0
    s_mov_b32 s41, 0
    s_lshl_b32 s42, s24, 12
    s_mul_i32 s43, s24, 6144
    s_add_u32 s43, s43, 0x10000
    s_mov_b32 s44, s42
    s_mov_b32 s45, s43
    s_add_u32 s46, s42, 0x10000
    s_waitcnt lgkmcnt(0)
    """)
    def stage_groups():
        g = []
        g.append(["s_mov_b32 m0, s42", "s_add_u32 s47, s43, 3072",
                  f"buffer_load_dwordx4 v{VO}, s[{SX}:{SX+3}], s40 offen lds"])
        for j in range(1, 4):
            g.append([f"buffer_load_dwordx4 v{VO+j}, s[{SX}:{SX+3}], s40 offen offset:{1024*j} lds"])
        for u in range(6):
            pre = []
            if u == 0: pre = ["s_mov_b32 m0, s43", "s_add_u32 s42, s42, 16384"]
            if u == 3: pre = ["s_mov_b32 m0, s47", "s_add_u32 s43, s43, 24576"]
            g.append(pre + [f"buffer_load_dwordx4 v{VO+4+u}, s[{SW}:{SW+3}], s41 offen offset:{1024*(u%3)} lds"])
        g[-1] += ["s_add_u32 s40, s40, 128", "s_add_u32 s41, s41, 393216",
                  "s_cmp_eq_u32 s42, s46", "s_cselect_b32 s42, s44, s42", "s_cselect_b32 s43, s45, s43"]
        return g
    if not side:
        for i in range(3): merge(a, stage_groups(), [])
        a("s_waitcnt vmcnt(20)\ns_barrier")
        a("s_mov_b32 s27, 13")
        a.label("K1_PLOOP")
        merge(a, stage_groups(), [])
        a("""s_waitcnt vmcnt(20)
        s_barrier
        s_sub_u32 s27, s27, 1
        s_cmp_lg_u32 s27, 0
        s_cbranch_scc1 K1_PLOOP
        s_waitcnt vmcnt(10)
        s_barrier
        s_waitcnt vmcnt(0)
        s_barrier""")
    else:
        from k1side import gen_side
        gen_side(a, stage_groups, merge, dict(SX=SX, SWS=SWS, SG=SG, L=L))
    a.label("K1_END")
    a("s_endpgm")
```

```python
from asmlib import *
from layout import *

def gen_k2(a):
    SWS, SRE, SIM = 8, 12, 16
    mf = "v_mfma_f32_32x32x16_bf16"
    O, NEG, S0, S1 = 0, 16, 32, 48
    S = (S0, S1); P = (64, 72); KF = (80, 88); VF = (96, 104)
    QF_, LL, SEL, IDX, L, L16, KA, NA, T0 = 112, 120, 124, 128, 129, 130, 131, 132, 133
    Z, TA, TB, TC, TS, RE, IM = 140, 156, 180, 196, 212, 32, 48
    JT = 228
    a(f"""
    s_cmp_ge_u32 s2, 256
    s_cbranch_scc1 K2_END
    s_load_dwordx2 s[{SWS}:{SWS+1}], s[0:1], {WS}
    v_lshrrev_b32 v1, 6, v0
    v_and_b32 v{L}, 63, v0
    s_mov_b32 s{SWS+2}, {WS_USED}
    v_readfirstlane_b32 s3, v1
    s_mov_b32 s{SWS+3}, 0x20000
    v_lshlrev_b32 v{L16}, 4, v{L}
    """)
    stamp(a, 0, True); stamp(a, 1)
    a(f"""
    s_and_b32 s4, s2, 7
    s_lshl_b32 s4, s4, 2
    s_bfe_u32 s5, s2, 0x20003
    s_add_u32 s4, s4, s5
    s_lshr_b32 s5, s2, 5
    s_lshl_b32 s5, s5, 3
    s_add_u32 s5, s5, s3
    s_lshl_b32 s20, s4, 18
    s_add_u32 s20, s20, {KV}
    s_lshl_b32 s21, s3, 12
    s_add_u32 s22, s20, s21
    s_lshl_b32 s23, s4, 6
    s_add_u32 s23, s23, s5
    s_lshl_b32 s23, s23, 11           ; Q offset
    s_lshl_b32 s24, s5, 16
    s_lshl_b32 s25, s4, 11
    s_add_u32 s24, s24, s25
    s_add_u32 s24, s24, {OF}          ; O offset
    s_lshr_b32 s26, s3, 1
    s_lshl_b32 s25, s2, 1
    s_add_u32 s26, s26, s25
    s_cmp_lt_u32 s3, 4
    s_cselect_b32 s27, 1, 0
    s_cmp_eq_u32 s26, 512
    s_cselect_b32 s27, 1, s27
    s_mov_b32 m0, s21
    s_waitcnt lgkmcnt(0)
    """)
    def dma():
        r = [f"buffer_load_dwordx4 v{L16}, s[{SWS}:{SWS+3}], s22 offen offset:{1024*i} lds" for i in range(4)]
        return r
    adv = ["s_add_u32 s21, s21, 0x8000", "s_and_b32 s21, s21, 0x1ffff", "s_add_u32 s22, s22, 0x8000", "s_mov_b32 m0, s21"]
    for t in dma(): a(t)
    a(f"buffer_load_dwordx4 {v(QF_,4)}, v{L16}, s[{SWS}:{SWS+3}], s23 offen")
    a(f"buffer_load_dwordx4 {v(QF_+4,4)}, v{L16}, s[{SWS}:{SWS+3}], s23 offen offset:1024")
    for t in adv: a(t)
    a("s_cmp_eq_u32 s27, 0\ns_cbranch_scc1 K2_NOJOB1")
    n_, h_, pi, t1, x0, x1 = [JT + i for i in range(6)]
    a(f"""
    v_and_b32 v{n_}, 31, v{L}
    v_lshrrev_b32 v{h_}, 5, v{L}
    v_and_b32 v{pi}, 3, v{L}
    v_bfe_u32 v{x0}, v{L}, 3, 2
    v_lshl_or_b32 v{pi}, v{x0}, 2, v{pi}
    v_bfe_u32 v{x0}, v{L}, 2, 1
    v_lshl_or_b32 v{pi}, v{x0}, 4, v{pi}        ; pi(n)
    s_and_b32 s28, s3, 1
    s_lshl_b32 s29, s28, 5
    v_or_b32 v{t1}, s29, v{pi}                  ; t1
    v_lshlrev_b32 v{x0}, 4, v{pi}
    v_lshl_or_b32 v{x0}, v{h_}, 9, v{x0}
    s_mul_i32 s30, s26, {ZP}
    s_add_u32 s31, s30, {ZT}
    """)
    for ks in range(4):
        a(f"buffer_load_dwordx4 {v(Z+4*ks,4)}, v{x0}, s[{SWS}:{SWS+3}], s31 offen offset:{1024*ks}")
    y0, y1, y2 = JT + 6, JT + 7, JT + 8
    a(f"""
    v_mov_b32 v{RE}, 0
    v_and_b32 v{y2}, 1, v{L}
    v_lshlrev_b32 v{y2}, 11, v{y2}
    v_lshl_or_b32 v{y2}, v{h_}, 30, v{y2}
    s_lshl_b32 s31, s26, 1
    s_add_u32 s31, s31, {RR}
    buffer_load_short_d16_hi v{RE}, v{y2}, s[{SWS}:{SWS+3}], s31 offen
    """)
    a.label("K2_NOJOB1")
    for st in range(2):
        for t in dma(): a(t)
        for t in adv: a(t)
    a(f"""
    v_mov_b32 v{KA}, v{L16}
    v_add_u32 v{NA}, 0x8000, v{L16}
    v_and_b32 v{T0}, 4, v{L}
    v_cmp_eq_u32 vcc, 0, v{T0}
    v_mov_b32 v{T0}, 0x3f803f80
    v_mov_b32 v{IDX}, 0xdddddddd
    v_cndmask_b32 v{SEL}, 0, v{T0}, vcc
    v_xor_b32 v{SEL+2}, v{SEL}, v{T0}
    v_mov_b32 v{SEL+1}, v{SEL}
    v_mov_b32 v{SEL+3}, v{SEL+2}
    """)
    z2 = lambda r: f"v_pk_mov_b32 {v(r,2)}, 0, 0"
    for r in list(range(O, O + 16, 2)) + [VF[1] + 4, VF[1] + 6, LL, LL + 2]:
        a(f"v_mov_b64 {v(r,2)}, 0")
    a("s_cmp_eq_u32 s27, 0\ns_cbranch_scc1 K2_NOJOB2")
    hf, tf, x5 = JT + 10, JT + 11, JT + 12
    W = JT + 14
    a(f"""
    v_cvt_f32_u32 v{tf}, v{t1}
    v_cvt_f32_u32 v{hf}, v{h_}
    v_mul_f32 v{x0}, {f2u(1/64)}, v{tf}
    v_mul_f32 v{x1}, 4.0, v{hf}
    v_mul_f32 v{x1}, v{x0}, v{x1}
    v_mul_f32 v{x5}, {f2u(5.0)}, v{x0}
    """)
    for k in range(16):
        o = k & 1
        a(f"v_cos_f32 v{W+o}, v{x1}")
        a(f"v_sin_f32 v{W+2+o}, v{x1}")
        if k < 15: a(f"v_add_f32 v{x1}, v{x1}, v{x5 if k % 4 == 3 else x0}")
        if o:
            d = TA + 6 * (k // 4) + (k % 4) // 2
            a(f"v_cvt_pk_bf16_f32 v{d+2}, v{W}, v{W+1}")
            a(f"v_cvt_pk_bf16_f32 v{d+4}, v{W+2}, v{W+3}")
            a(f"v_xor_b32 v{d}, 0x80008000, v{d+4}")
    a(f"""
    v_mul_f32 v{hf}, {f2u(16.0)}, v{hf}
    v_mul_f32 v{x0}, {f2u(1/2048)}, v{tf}
    v_mul_f32 v{x1}, v{x0}, v{hf}
    v_mov_b32 v{RE+1}, 0
    """)
    for r in range(RE + 2, RE + 16, 2): a(f"v_mov_b64 {v(r,2)}, 0")
    for k in range(16):
        a(f"v_cos_f32 v{TC+k}, v{x1}")
        a(f"v_sin_f32 v{TS+k}, v{x1}")
        if k < 15: a(f"v_add_f32 v{x1}, v{x1}, v{x0}")
    a(f"""
    v_cvt_f32_u32 v{x0}, v{n_}
    v_mul_f32 v{x0}, {f2u(1/32)}, v{x0}
    v_mul_f32 v{x1}, v{x0}, v{hf}
    """)
    for k in range(16):
        o = k & 1
        a(f"v_cos_f32 v{W+o}, v{x1}")
        a(f"v_sin_f32 v{W+2+o}, v{x1}")
        if k < 15: a(f"v_add_f32 v{x1}, v{x1}, v{x0}")
        if o:
            a(f"v_cvt_pk_bf16_f32 v{TB+k//2}, v{W}, v{W+1}")
            a(f"v_cvt_pk_bf16_f32 v{TB+8+k//2}, v{W+2}, v{W+3}")
    a(f"""
    v_lshlrev_b32 v{y0}, 7, v{n_}
    v_lshl_or_b32 v{y0}, v{h_}, 5, v{y0}
    s_lshl_b32 s28, s28, 6
    s_add_u32 s30, s30, s28
    s_add_u32 s30, s30, {YT}
    s_waitcnt vmcnt({2+5+8})
    """)
    stamp(a, 2)
    a("s_barrier")
    stamp(a, 3)
    a("s_waitcnt vmcnt(8)")
    for ks in range(4):
        a(f"{mf} {v(RE,16)}, {v(Z+4*ks,4)}, {v(TA+6*ks+2,4)}, {v(RE,16)}")
        a(f"{mf} {v(IM,16)}, {v(Z+4*ks,4)}, {v(TA+6*ks,4)}, {'0' if ks == 0 else v(IM,16)}")
    PR, PI = Z, Z + 8
    for k in range(0, 16, 2):
        t = JT + 10 + 4 * ((k // 2) % 2)
        a(f"v_pk_mul_f32 {v(t,2)}, {v(RE+k,2)}, {v(TC+k,2)}")
        a(f"v_pk_mul_f32 {v(t+2,2)}, {v(IM+k,2)}, {v(TC+k,2)}")
        a(f"v_pk_fma_f32 {v(t,2)}, {v(IM+k,2)}, {v(TS+k,2)}, {v(t,2)}")
        a(f"v_pk_fma_f32 {v(t+2,2)}, {v(RE+k,2)}, {v(TS+k,2)}, {v(t+2,2)} neg_lo:[1,0,0] neg_hi:[1,0,0]")
        a(f"v_cvt_pk_bf16_f32 v{PR+k//2}, v{t}, v{t+1}")
        a(f"v_cvt_pk_bf16_f32 v{PI+k//2}, v{t+2}, v{t+3}")
        if k == 6:
            a(f"{mf} {v(TA,16)}, {v(PR,4)}, {v(TB,4)}, 0")
            a(f"{mf} {v(TA,16)}, {v(PI,4)}, {v(TB+8,4)}, {v(TA,16)}")
    a(f"{mf} {v(TA,16)}, {v(PR+4,4)}, {v(TB+4,4)}, {v(TA,16)}")
    a(f"{mf} {v(TA,16)}, {v(PI+4,4)}, {v(TB+12,4)}, {v(TA,16)}")
    for k in range(8): a(f"v_cvt_pk_bf16_f32 v{TC+k}, v{TA+2*k}, v{TA+2*k+1}")
    a(f"""
    buffer_store_dwordx4 {v(TC,4)}, v{y0}, s[{SWS}:{SWS+3}], s30 offen
    buffer_store_dwordx4 {v(TC+4,4)}, v{y0}, s[{SWS}:{SWS+3}], s30 offen offset:16
    s_add_u32 s30, s30, 4096
    s_cmp_lg_u32 s28, 0
    s_cbranch_scc1 K2_START
    s_mov_b64 exec, 1
    buffer_store_short v{TC}, v{y0}, s[{SWS}:{SWS+3}], s30 offen
    s_mov_b64 exec, -1
    s_branch K2_START
    """)
    a.label("K2_NOJOB2")
    a("s_waitcnt vmcnt(8)")
    stamp(a, 2)
    a("s_barrier")
    stamp(a, 3)
    a.label("K2_START")
    rdK = lambda b, base, tile: [f"ds_read_b128 {v(KF[b]+4*j,4)}, v{base} offset:{tile*4096+j*1024}" for j in range(2)]
    rdV = lambda b, base, tile: [f"ds_read_b128 {v(VF[b]+4*j,4)}, v{base} offset:{tile*4096+2048+j*1024}" for j in range(2)]
    def qk(b, j, c): return f"{mf} {v(S[b],16)}, {v(KF[b]+4*j,4)}, {v(QF_+4*j,4)}, {c if j == 0 else v(S[b],16)}"
    def pv(b, j): return f"v_smfmac_f32_32x32x32_bf16 {v(O,16)}, {v(VF[b]+4*j,4)}, {v(S[b]+8*j,8)}, v{IDX}"
    def lsum(b, j): return f"v_smfmac_f32_16x16x64_bf16 {v(LL,4)}, {v(SEL,4)}, {v(S[b]+8*j,8)}, v{IDX}"
    def rowmax(src, acc, first):
        r = []
        if first: r.append(f"v_max_f32 v{acc}, v{src}, v{src+1}")
        for k in range(2 if first else 0, 16, 2): r.append(f"v_max3_f32 v{acc}, v{src+k}, v{src+k+1}, v{acc}")
        return r
    def setneg(acc):
        r = [f"v_mov_b32 v{acc+1}, v{acc}", f"v_permlane32_swap_b32 v{acc}, v{acc+1}", f"v_max_f32 v{acc}, v{acc}, v{acc+1}",
             f"v_sub_f32 v{NEG}, 0, v{acc}", f"v_sub_f32 v{NEG+1}, 0, v{acc}"]
        for k in range(2, 16, 2): r.append(f"v_mov_b64 {v(NEG+k,2)}, {v(NEG,2)}")
        return r
    for t in rdK(0, KA, 0) + rdK(1, KA, 1) + rdV(0, KA, 0): a(t)
    for r in range(S1 + 8, S1 + 16, 2): a(f"v_mov_b64 {v(r,2)}, 0")
    a("s_waitcnt lgkmcnt(4)")
    a(qk(0, 0, "0")); a(qk(0, 1, None))
    for t in rowmax(S0, T0, True) + setneg(T0): a(t)
    a(qk(0, 0, v(NEG, 16))); a(qk(0, 1, None))
    a("s_mov_b32 s33, 0\ns_nop 7")
    stamp(a, 4)
    a(".p2align 6")
    a.label("K2_LOOP")
    ex = lambda b, k: f"v_exp_f32 v{S[b]+k}, v{S[b]+k}"
    cv = lambda b, k: f"v_cvt_pk_bf16_f32 v{P[b]+k}, v{S[b]+2*k}, v{S[b]+2*k+1}"
    for i in range(8):
        b = i & 1
        rk = rdK(b, KA, i + 2) if i < 6 else rdK(b, NA, i - 6)
        rv = rdV(b ^ 1, KA, i + 1) if i < 7 else rdV(b ^ 1, NA, 0)
        a(ex(b, 0))
        a("s_waitcnt lgkmcnt(0)")
        a(pv(b ^ 1, 1))
        if i == 6:
            a("s_waitcnt vmcnt(0)\ns_barrier")
        a(rk[0]); a(ex(b, 1)); a(rk[1]); a(ex(b, 2)); a(rv[0]); a(ex(b, 3))
        a(lsum(b ^ 1, 1))
        a(rv[1])
        a(ex(b, 4))
        a(qk(b ^ 1, 0, v(NEG, 16)))
        a(ex(b, 5)); a(ex(b, 6)); a(ex(b, 7))
        a(qk(b ^ 1, 1, None))
        if i == 6:
            a("s_cmp_ge_u32 s33, 5\ns_cbranch_scc1 K2_NODMA")
            for t in dma() + adv: a(t)
            a.label("K2_NODMA")
        a(ex(b, 8)); a(ex(b, 9)); a(ex(b, 10))
        a(pv(b, 0))
        a(ex(b, 11)); a(ex(b, 12)); a(ex(b, 13))
        a(lsum(b, 0))
        if i == 7:
            a(f"v_mov_b32 v{KA}, v{NA}")
            a(f"v_add_u32 v{NA}, 0x8000, v{NA}")
            a("s_add_u32 s33, s33, 1\ns_cmp_lt_u32 s33, 8")
        a(ex(b, 14))
        if i == 7: a(f"v_and_b32 v{NA}, 0x1ffff, v{NA}")
        a(ex(b, 15))
    a("s_cbranch_scc1 K2_LOOP")
    a(pv(1, 1)); a(lsum(1, 1))
    stamp(a, 5)
    a(f"v_mov_b64 {v(T0+1,2)}, 0" if (T0 + 1) % 2 == 0 else "")
    a(f"s_mov_b32 s34, {f2u(2.0**96)}")
    a(f"v_mov_b32 v{T0}, v{LL}")
    for k in range(0, 16, 2): a(f"v_pk_fma_f32 {v(T0+1,2)}, {v(O+k,2)}, 0, {v(T0+1,2)}")
    a(f"""
    v_add_f32 v{T0+1}, v{T0+1}, v{T0+2}
    v_add_f32 v{T0+1}, v{T0+1}, v{T0}
    v_cmp_ngt_f32 vcc, s34, v{T0+1}
    s_cbranch_vccnz K2_SLOW
    """)
    a.label("K2_EPI")
    a(f"v_rcp_f32 v{T0+1}, v{T0}")
    a(f"v_mov_b32 v{T0+2}, v{T0+1}")
    for k in range(0, 16, 2):
        a(f"v_pk_mul_f32 {v(O+k,2)}, {v(O+k,2)}, {v(T0+1,2)}")
        a(f"v_cvt_pk_bf16_f32 v{P[0]+k//2}, v{O+k}, v{O+k+1}")
        if k == 6: a(f"buffer_store_dwordx4 {v(P[0],4)}, v{L16}, s[{SWS}:{SWS+3}], s24 offen")
    a(f"buffer_store_dwordx4 {v(P[0]+4,4)}, v{L16}, s[{SWS}:{SWS+3}], s24 offen offset:1024")
    if STAMPS: a("s_waitcnt vmcnt(0)")
    stamp(a, 6); stamp(a, 7, True)
    stamp_flush(a, 8, SWS, 1, 3)
    a.label("K2_END")
    a("s_endpgm")
    a.label("K2_SLOW")
    gl = lambda r, off: f"buffer_load_dwordx4 {v(r,4)}, v{L16}, s[{SWS}:{SWS+3}], s22 offen offset:{off}"
    a(f"""
    s_waitcnt lgkmcnt(0)
    v_mov_b32 v{T0}, 0xff800000
    s_mov_b32 s22, s20
    s_mov_b32 s33, 0
    """)
    a.label("K2_SL1")
    a(gl(KF[0], 0)); a(gl(KF[0] + 4, 1024))
    a("s_add_u32 s22, s22, 4096\ns_waitcnt vmcnt(0)")
    a(qk(0, 0, "0")); a(qk(0, 1, None))
    for t in rowmax(S0, T0, False): a(t)
    a("s_add_u32 s33, s33, 1\ns_cmp_lt_u32 s33, 64\ns_cbranch_scc1 K2_SL1")
    for t in setneg(T0): a(t)
    for r in list(range(O, O + 16, 2)) + [LL, LL + 2]: a(f"v_mov_b64 {v(r,2)}, 0")
    a("s_mov_b32 s22, s20\ns_mov_b32 s33, 0")
    a.label("K2_SL2")
    a(gl(KF[0], 0)); a(gl(KF[0] + 4, 1024)); a(gl(VF[0], 2048)); a(gl(VF[0] + 4, 3072))
    a("s_add_u32 s22, s22, 4096\ns_waitcnt vmcnt(0)")
    a(qk(0, 0, v(NEG, 16))); a(qk(0, 1, None))
    for k in range(16): a(ex(0, k))
    a(pv(0, 0)); a(pv(0, 1)); a(lsum(0, 0)); a(lsum(0, 1))
    a("s_add_u32 s33, s33, 1\ns_cmp_lt_u32 s33, 64\ns_cbranch_scc1 K2_SL2")
    a(f"s_nop 7\ns_nop 7\nv_mov_b32 v{T0}, v{LL}")
    a("s_branch K2_EPI")
```

```python
from asmlib import *
from layout import *
import math

def merge(a, groups, fill):
    n = len(groups); k = 0
    for i, g in enumerate(groups):
        for t in g: a(t)
        e = (len(fill) * (i + 1)) // n
        for t in fill[k:e]: a(t)
        k = e

def gen_k1(a, side=True):
    NTX = os.environ.get("NTX", ""); NTW = os.environ.get("NTW", ""); PF = os.environ.get("PF", "")
    ROT = {"0": "s_mov_b32 s41, 0", "1": "s_and_b32 s41, s4, 7", "2": "s_mov_b32 s41, s4", "3": "s_add_u32 s41, s4, s5\n s_and_b32 s41, s41, 15",
           "4": "s_mov_b32 s41, s5",
           "7": "s_lshl_b32 s41, s4, 1\n s_and_b32 s41, s41, 15",
           "8": "s_lshl_b32 s41, s2, 1\n s_and_b32 s41, s41, 15",
           "9": "s_lshl_b32 s41, s4, 2\n s_and_b32 s41, s41, 15",
           "5": "s_lshl_b32 s41, s5, 1\n s_add_u32 s41, s41, s4\n s_lshl_b32 s41, s41, 1\n s_and_b32 s41, s41, 15",
           "6": "s_lshl_b32 s41, s5, 1\n s_add_u32 s41, s41, s4\n s_lshl_b32 s41, s41, 1\n s_bfe_u32 s40, s2, 0x20001\n s_add_u32 s41, s41, s40\n s_and_b32 s40, s2, 1\n s_add_u32 s41, s41, s40\n s_and_b32 s41, s41, 15"}[os.environ.get("ROT", "7")]
    SX, SW, SWS, SG = 8, 12, 16, 20
    a(f"""
    s_cmp_ge_u32 s2, 256
    s_cbranch_scc1 K1_END
    s_load_dwordx2 s[{SX}:{SX+1}], s[0:1], {A_X}
    s_load_dwordx2 s[{SW}:{SW+1}], s[0:1], {B_WQKV}
    s_load_dwordx2 s[{SWS}:{SWS+1}], s[0:1], {WS}
    s_load_dwordx2 s[{SG}:{SG+1}], s[0:1], {GATE}
    v_lshrrev_b32 v1, 6, v0
    v_and_b32 v99, 63, v0
    s_mov_b32 s{SX+2}, 0x400000
    v_readfirstlane_b32 s3, v1
    s_mov_b32 s{SX+3}, 0x20000
    s_mov_b32 s{SW+2}, 0x600000
    s_mov_b32 s{SW+3}, 0x20000
    s_mov_b32 s{SWS+2}, {WS_USED}
    s_mov_b32 s{SWS+3}, 0x20000
    s_mov_b32 s{SG+2}, 0x800
    s_mov_b32 s{SG+3}, 0x20000
    s_and_b32 s4, s2, 1
    s_lshl_b32 s4, s4, 3
    s_bfe_u32 s5, s2, 0x30003
    s_add_u32 s4, s4, s5
    s_bfe_u32 s5, s2, 0x20001
    s_lshl_b32 s5, s5, 2
    s_lshr_b32 s6, s2, 6
    s_add_u32 s5, s5, s6
    s_cmp_ge_u32 s3, 4
    s_cbranch_scc1 K1_PROD
    """)
    L = 99
    stamp(a, 0, True); stamp(a, 1)
    XF = lambda b, tt: 96 + 4 + 8 * b + 4 * tt
    WF = lambda b, sg: 116 + 12 * b + 4 * sg
    XA = 140; WA = 144; T0 = 146
    a(f"""
    s_setprio 2
    s_and_b32 s24, s3, 1
    s_lshr_b32 s25, s3, 1
    v_and_b32 v{T0}, 31, v{L}       ; r
    v_lshrrev_b32 v{T0+1}, 5, v{L}  ; h
    v_bfe_u32 v{T0+2}, v{L}, 1, 3   ; (r>>1)&7
    v_xor_b32 v{T0+2}, v{T0+2}, v{T0+1}
    v_lshlrev_b32 v{T0+2}, 4, v{T0+2}
    v_lshl_or_b32 v{T0+2}, v{T0}, 7, v{T0+2}
    s_lshl_b32 s26, s24, 13
    v_add_u32 v{XA}, s26, v{T0+2}
    v_xor_b32 v{XA+1}, 32, v{XA}
    v_xor_b32 v{XA+2}, 64, v{XA}
    v_xor_b32 v{XA+3}, 96, v{XA}
    ; W address
    v_bfe_u32 v{T0+2}, v{L}, 2, 2   ; rr
    v_lshl_or_b32 v{T0+2}, v{T0+1}, 3, v{T0+2}
    v_lshlrev_b32 v{T0+2}, 7, v{T0+2}
    v_bfe_u32 v{T0+3}, v{L}, 3, 1   ; (rr>>1)&1
    v_xor_b32 v{T0+3}, s25, v{T0+3}
    v_lshl_or_b32 v{T0+2}, v{T0+3}, 6, v{T0+2}
    v_bfe_u32 v{T0+3}, v{L}, 4, 1   ; g2
    v_lshl_or_b32 v{T0+2}, v{T0+3}, 5, v{T0+2}
    v_and_b32 v{T0+3}, 3, v{L}
    v_lshl_or_b32 v{T0+2}, v{T0+3}, 3, v{T0+2}
    v_add_u32 v{WA}, 0x10000, v{T0+2}
    v_add_u32 v{WA+1}, 0x1c000, v{T0+2}
    v_lshlrev_b32 v{T0}, 4, v{L}
    v_and_b32 v{T0+1}, 0x330, v{T0}
    v_bfe_u32 v{T0+2}, v{L}, 2, 1
    v_lshl_or_b32 v{T0+1}, v{T0+2}, 7, v{T0+1}
    v_bfe_u32 v{T0+2}, v{L}, 3, 1
    v_lshl_or_b32 v{T0+1}, v{T0+2}, 6, v{T0+1}
    """)
    if os.environ.get("CPF", "1") == "1":
        a(f"""
        s_getpc_b64 s[36:37]
        K1_PC:
        s_lshr_b32 s28, s2, 3
        s_lshl_b32 s28, s28, 2
        s_add_u32 s28, s28, s3
        s_lshl_b32 s28, s28, 9
        v_lshlrev_b32 v150, 7, v{L}
        v_add_u32 v150, s28, v150
        v_min_u32 v150, TEXT_END-K1_PC-4, v150
        s_mov_b64 exec, 15
        global_load_dword v151, v150, s[36:37]
        s_mov_b64 exec, -1
        """)
    PX, PW = 150, 151
    def pf(lab, rem):
        if not PF: return
        a(f"""
        s_cmp_eq_u32 s{rem}, 0
        s_cbranch_scc1 {lab}
        buffer_load_dword v152, v{PX}, s[{SX}:{SX+3}], s35 offen
        buffer_load_dword v153, v{PW}, s[{SW}:{SW+3}], s36 offen
        s_sub_u32 s{rem}, s{rem}, 1
        s_add_u32 s35, s35, 1024
        s_add_u32 s36, s36, {8*393216}
        {lab}:
        """)
    if PF:
        a(f"""
        s_lshr_b32 s28, s2, 3
        s_and_b32 s29, s2, 1
        s_lshl_b32 s29, s29, 5
        s_add_u32 s29, s29, s28
        s_lshl_b32 s35, s29, 16
        v_and_b32 v{PX}, 31, v{L}
        v_lshlrev_b32 v{PX}, 11, v{PX}
        v_lshrrev_b32 v{PW}, 5, v{L}
        v_lshl_or_b32 v{PX}, v{PW}, 7, v{PX}
        v_lshrrev_b32 v{PW}, 4, v{L}
        v_mul_u32_u24 v{PW}, 6144, v{PW}
        v_bfe_u32 v152, v{L}, 2, 2
        v_min_u32 v152, 2, v152
        v_lshl_add_u32 v{PW}, v152, 11, v{PW}
        v_and_b32 v152, 3, v{L}
        v_lshl_add_u32 v{PW}, v152, 7, v{PW}
        s_mul_i32 s36, s28, {4*6144}
        s_bfe_u32 s29, s2, 0x20001
        s_lshl_b32 s29, s29, 9
        s_add_u32 s36, s36, s29
        s_add_u32 s29, s3, 1
        s_lshl_b32 s28, s29, 8
        s_add_u32 s35, s35, s28
        s_mul_i32 s28, s29, {2*393216}
        s_add_u32 s36, s36, s28
        s_cmp_lt_u32 s3, 2
        s_cselect_b32 s34, 2, 0
        s_sub_u32 s33, 4, s3
        s_cmp_lt_u32 s3, 2
        s_cselect_b32 s33, 0, s33        ; A points: w2: 2, w3: 1
        """)
    for i in range(96): a(f"v_mov_b32 v{i}, 0")
    def reads(slot, st, b):
        r = []
        for tt in range(2):
            r.append(f"ds_read_b128 {v(XF(b,tt),4)}, v{XA+st} offset:{slot*16384 + tt*4096}")
        for sg in range(3):
            for sec in range(2):
                r.append(f"ds_read_b64_tr_b16 {v(WF(b,sg)+2*sec,2)}, v{WA+(slot>>1)} offset:{(slot&1)*24576 + sg*8192 + st*2048 + sec*512}")
        return [[r[0], r[2], r[3]], [r[1], r[4], r[5]], [r[6], r[7]]]
    def mfmas(b):
        m = []
        for sg in range(3):
            for tt in range(2):
                acc = v(16 * (tt * 3 + sg), 16)
                if sg < 2: m.append(f"v_mfma_f32_32x32x16_bf16 {acc}, {v(WF(b,sg),4)}, {v(XF(b,tt),4)}, {acc}")
                else:      m.append(f"v_mfma_f32_32x32x16_bf16 {acc}, {v(XF(b,tt),4)}, {v(WF(b,sg),4)}, {acc}")
        return m
    a("s_mov_b32 s27, 4")
    if PF:
        a("s_waitcnt lgkmcnt(0)")
        if int(PF) > 1: a(f"s_sleep {int(PF)}")
        pf("K1_PF0", 34)
    stamp(a, 2)
    a("s_barrier")
    stamp(a, 3)
    for g in reads(0, 0, 0):
        for t in g: a(t)
    a(".p2align 6")
    a.label("K1_CLOOP")
    for slot in range(4):
        for st in range(4):
            b = st & 1
            m = mfmas(b)
            nslot, nst = (slot, st + 1) if st < 3 else ((slot + 1) & 3, 0)
            rd = reads(nslot, nst, b ^ 1)
            a("s_waitcnt lgkmcnt(0)")
            a(m[0])
            if st == 3:
                if slot == 3:
                    a("s_sub_u32 s27, s27, 1")
                    a("s_cmp_eq_u32 s27, 0")
                    a("s_cbranch_scc1 K1_CTAIL")
                a("s_barrier")
            for i in range(3):
                for t in rd[i]: a(t)
                a(m[i + 1])
            if st == 0 and slot == 0: pf("K1_PFA", 33)
            if st == 0 and slot == 2: pf("K1_PFB", 34)
            a(m[4])
            a(m[5])
    a("s_branch K1_CLOOP")
    a.label("K1_CTAIL")
    for t in mfmas(1)[1:]: a(t)
    stamp(a, 4)
    qs = math.log2(math.e) / math.sqrt(32.0)
    a(f"""
    s_lshl_b32 s28, s5, 1
    s_add_u32 s28, s28, s25
    s_lshl_b32 s28, s28, 6
    s_lshl_b32 s29, s4, 2
    s_add_u32 s28, s28, s29
    s_lshl_b32 s29, s24, 1
    s_add_u32 s28, s28, s29
    s_lshl_b32 s29, s28, 11          ; Q offset
    s_lshl_b32 s30, s28, 12
    s_add_u32 s30, s30, {KV}
    s_add_u32 s31, s30, 4096
    s_mov_b32 s32, {f2u(qs)}
    """)
    PK = 100
    n = 0
    for sg in range(3):
        for tt in range(2):
            base = 16 * (tt * 3 + sg)
            pk = PK + 8 * (n % 4); n += 1
            if sg == 0:
                for i in range(16): a(f"v_mul_f32 v{base+i}, s32, v{base+i}")
            for j in range(2):
                for i in range(4):
                    a(f"v_cvt_pk_bf16_f32 v{pk+4*j+i}, v{base+8*j+2*i}, v{base+8*j+2*i+1}")
                if sg == 0: so, off = 29, tt * 2048 + j * 1024
                else: so, off = 30 + tt, (sg - 1) * 2048 + j * 1024
                a(f"buffer_store_dwordx4 {v(pk+4*j,4)}, v{T0+(sg==1)}, s[{SWS}:{SWS+3}], s{so} offen offset:{off}")
    stamp(a, 5)
    if STAMPS: a("s_waitcnt vmcnt(0)")
    stamp(a, 6); stamp(a, 7, True)
    stamp_flush(a, 8, SWS, 0, 3)
    a("s_endpgm")

    a(".p2align 6")
    a.label("K1_PROD")
    VO = 100
    stamp(a, 0, True); stamp(a, 1)
    T = 88
    a(f"""
    s_sub_u32 s24, s3, 4             ; p
    v_lshrrev_b32 v{T}, 3, v{L}      ; i>>3
    v_and_b32 v{T+1}, 7, v{L}        ; i&7
    v_lshrrev_b32 v{T+2}, 4, v{L}    ; i>>4
    v_xor_b32 v{T+3}, v{T+1}, v{T+2}
    v_lshlrev_b32 v{T+3}, 4, v{T+3}
    v_lshl_or_b32 v{T+3}, v{T}, 11, v{T+3}
    s_lshl_b32 s25, s4, 18           ; rt*128*2048
    s_lshl_b32 s26, s24, 16          ; p*32*2048
    s_add_u32 s25, s25, s26
    v_add_u32 v{VO}, s25, v{T+3}
    v_xor_b32 v{VO+1}, 64, v{VO}
    v_add_u32 v{VO+1}, {16384-1024}, v{VO+1}
    v_add_u32 v{VO+2}, {2*(16384-1024)}, v{VO}
    v_add_u32 v{VO+3}, {2*(16384-1024)}, v{VO+1}
    ; W
    v_and_b32 v{T+2}, 1, v{T+2}
    v_lshlrev_b32 v{T+2}, 2, v{T+2}
    v_xor_b32 v{T+3}, v{T+1}, v{T+2}
    v_lshlrev_b32 v{T+3}, 4, v{T+3}
    s_movk_i32 s26, 6144
    v_mad_u32_u24 v{T+3}, v{T}, s26, v{T+3}
    s_lshl_b32 s27, s5, 7            ; cg*128
    s_mul_i32 s28, s24, 6
    """)
    for u in range(6):
        a(f"""
        s_add_u32 s29, s28, {u}
        s_and_b32 s30, s29, 7
        s_mul_i32 s30, s30, 49152
        s_lshr_b32 s29, s29, 3
        s_lshl_b32 s29, s29, 11
        s_add_u32 s29, s29, s30
        s_add_u32 s29, s29, s27
        s_sub_u32 s29, s29, {1024*(u%3)}
        v_add_u32 v{VO+4+u}, s29, v{T+3}
        """)
    a(f"""
    {ROT}
    s_lshl_b32 s40, s41, 7
    s_mul_i32 s41, s41, 393216
    s_lshl_b32 s42, s24, 12
    s_mul_i32 s43, s24, 6144
    s_add_u32 s43, s43, 0x10000
    s_mov_b32 s44, s42
    s_mov_b32 s45, s43
    s_add_u32 s46, s42, 0x10000
    """)
    stamp(a, 2)
    a("s_waitcnt lgkmcnt(0)")
    stamp(a, 3)
    def stage_groups():
        g = []
        g.append(["s_mov_b32 m0, s42", "s_add_u32 s47, s43, 3072",
                  f"buffer_load_dwordx4 v{VO}, s[{SX}:{SX+3}], s40 offen{NTX} lds"])
        for j in range(1, 4):
            g.append([f"buffer_load_dwordx4 v{VO+j}, s[{SX}:{SX+3}], s40 offen offset:{1024*j}{NTX} lds"])
        for u in range(6):
            pre = []
            if u == 0: pre = ["s_mov_b32 m0, s43", "s_add_u32 s42, s42, 16384"]
            if u == 3: pre = ["s_mov_b32 m0, s47", "s_add_u32 s43, s43, 24576"]
            g.append(pre + [f"buffer_load_dwordx4 v{VO+4+u}, s[{SW}:{SW+3}], s41 offen offset:{1024*(u%3)}{NTW} lds"])
        g[-1] += ["s_add_u32 s40, s40, 128", "s_add_u32 s41, s41, 393216",
                  "s_cmp_eq_u32 s40, 2048", "s_cselect_b32 s40, 0, s40", "s_cselect_b32 s41, 0, s41",
                  "s_cmp_eq_u32 s42, s46", "s_cselect_b32 s42, s44, s42", "s_cselect_b32 s43, s45, s43"]
        return g
    if not side:
        for i in range(3): merge(a, stage_groups(), [])
        a("s_waitcnt vmcnt(20)\ns_barrier")
        a("s_mov_b32 s27, 13")
        a.label("K1_PLOOP")
        merge(a, stage_groups(), [])
        a("""s_waitcnt vmcnt(20)
        s_barrier
        s_sub_u32 s27, s27, 1
        s_cmp_lg_u32 s27, 0
        s_cbranch_scc1 K1_PLOOP
        s_waitcnt vmcnt(10)
        s_barrier
        s_waitcnt vmcnt(0)
        s_barrier""")
    else:
        from k1side import gen_side
        gen_side(a, stage_groups, merge, dict(SX=SX, SWS=SWS, SG=SG, L=L))
    a.label("K1_END")
    a("s_endpgm")
```

```python
from asmlib import *
from layout import *

def gen_side(a, stage_groups, merge, R):
    SX, SWS, SG, L = R["SX"], R["SWS"], R["SG"], R["L"]
    ZA, ZB, ZF, FR, FI, G1, G2, PR, PI = 0, 16, 32, 40, 48, 56, 64, 72, 80
    M = 88
    TC, TS, YR, YI, TMP, D3, GX, GW = 112, 128, 144, 160, 176, 208, 224, 240
    UNR = 110
    r_, h_, l16, e32, ang, a1, a2, a2s, gxa, uvo, t0 = [M + i for i in range(11)]
    pre = f"""
    s_and_b32 s50, s2, 7
    s_lshl_b32 s50, s50, 2
    s_add_u32 s50, s50, s24
    s_lshl_b32 s50, s50, 5
    s_lshr_b32 s51, s2, 3
    s_add_u32 s50, s50, s51
    s_sub_u32 s51, 2048, s50
    s_cmp_eq_u32 s50, 0
    s_cselect_b32 s51, 1024, s51
    s_mov_b32 s52, -1.0
    s_mov_b32 s54, {RR + 2048}
    s_add_u32 s53, s44, 49152
    s_lshl_b32 s55, s50, 11
    s_lshl_b32 s56, s51, 11
    s_sub_u32 s56, s56, 2048
    v_lshlrev_b32 v{l16}, 4, v{L}
    v_and_b32 v{r_}, 31, v{L}
    v_lshrrev_b32 v{h_}, 5, v{L}
    v_lshlrev_b32 v{gxa}, 4, v{r_}
    """.strip().split("\n")
    side_loads = [["s_mov_b32 m0, s53", "s_nop 0", f"buffer_load_dwordx4 v{l16}, s[{SX}:{SX+3}], s55 offen lds"],
                  [f"buffer_load_dwordx4 v{l16}, s[{SX}:{SX+3}], s55 offen offset:1024 lds"],
                  [f"buffer_load_dwordx4 v{l16}, s[{SX}:{SX+3}], s56 offen offset:2048 lds"],
                  [f"buffer_load_dwordx4 v{l16}, s[{SX}:{SX+3}], s56 offen offset:3072 lds"]]
    for i in range(4):
        side_loads.append([f"buffer_load_dwordx4 {v(GW+4*i,4)}, v{gxa}, s[{SG}:{SG+3}], 0 offen offset:{512*i}"])
    tw = []
    E = tw.append
    E(f"v_and_b32 v{t0}, 0x13, v{r_}")
    E(f"v_bfe_u32 v{ang}, v{r_}, 2, 1")
    E(f"v_lshl_or_b32 v{t0}, v{ang}, 3, v{t0}")
    E(f"v_bfe_u32 v{ang}, v{r_}, 3, 1")
    E(f"v_lshl_or_b32 v{t0}, v{ang}, 2, v{t0}")
    E(f"v_cvt_f32_u32 v{t0}, v{t0}")
    E(f"v_cvt_f32_u32 v{a1}, v{h_}")
    E(f"v_mul_f32 v{e32}, {f2u(-1/32)}, v{t0}")
    E(f"v_mul_f32 v{ang}, v{e32}, v{a1}")
    E(f"v_mul_f32 v{ang}, {f2u(8.0)}, v{ang}")
    def table(step_reg, base_reg, offs, cdst, sdst, pack):
        for k in range(16):
            t = TMP + 2 * (k % 4)
            if offs[k] == 0: src = base_reg
            else:
                E(f"v_fmamk_f32 v{TMP+8}, v{step_reg}, {f2u(float(offs[k]))}, v{base_reg}"); src = TMP + 8
            if pack:
                E(f"v_cos_f32 v{t}, v{src}"); E(f"v_sin_f32 v{t+1}, v{src}")
                if k % 2 == 1:
                    E(f"v_cvt_pk_bf16_f32 v{cdst+k//2}, v{t-2}, v{t}")
                    E(f"v_cvt_pk_bf16_f32 v{sdst+k//2}, v{t-1}, v{t+1}")
            else:
                E(f"v_cos_f32 v{cdst+k}, v{src}"); E(f"v_sin_f32 v{sdst+k}, v{src}")
    table(e32, ang, [16 * (k // 8) + k % 8 for k in range(16)], FR, FI, True)
    dofs = [8 * (k // 4) + k % 4 for k in range(16)]
    E(f"v_mul_f32 v{e32}, {f2u(1/1024)}, v{t0}")
    E(f"v_mul_f32 v{ang}, v{e32}, v{a1}")
    E(f"v_mul_f32 v{ang}, 4.0, v{ang}")
    table(e32, ang, dofs, TC, TS, False)
    E(f"v_and_b32 v{t0}, 15, v{r_}")
    E(f"v_cvt_f32_u32 v{t0}, v{t0}")
    E(f"v_mul_f32 v{e32}, {f2u(1/32)}, v{t0}")
    E(f"v_mul_f32 v{ang}, v{e32}, v{a1}")
    E(f"v_mul_f32 v{ang}, 4.0, v{ang}")
    E(f"v_lshrrev_b32 v{t0}, 4, v{r_}")
    E(f"v_cvt_f32_u32 v{t0}, v{t0}")
    E(f"v_fmamk_f32 v{ang}, v{t0}, {f2u(0.25)}, v{ang}")
    table(e32, ang, dofs, G1, G2, True)
    ga = []
    E = ga.append
    for i in range(0, 32, 2): E(f"v_mov_b64 {v(ZA+i,2)}, 0")
    E(f"v_lshlrev_b32 v{t0}, 1, v{r_}")
    E(f"v_lshl_or_b32 v{t0}, v{h_}, 9, v{t0}")
    E(f"v_add_u32 v{D3}, s53, v{t0}")
    E(f"s_add_u32 s57, s53, {4096 - 64*23}")
    E(f"v_sub_u32 v{a2}, s57, v{t0}")
    E(f"v_cmp_eq_u32 vcc, 0, v{L}")
    E(f"v_subrev_u32 v{t0}, 2048, v{a2}")
    E(f"v_lshl_or_b32 v{D3+1}, v{h_}, 11, v{gxa}")
    E(f"v_cndmask_b32 v{a2s}, v{a2}, v{t0}, vcc")
    E(f"v_add_u32 v{D3+1}, s53, v{D3+1}")
    E(f"v_lshlrev_b32 v{uvo}, 6, v{r_}")
    E(f"v_lshl_or_b32 v{uvo}, v{h_}, 4, v{uvo}")
    gathers = []
    for k in range(16):
        d = 16 * (k // 8) + k % 8
        gathers.append(f"ds_read_u16_d16_hi v{ZA+k}, v{D3} offset:{64*d}")
        gathers.append(f"ds_read_u16_d16_hi v{ZB+k}, v{a2s if k == 0 else a2} offset:{64*(23-d)}")
    for i in range(4):
        gathers.append(f"ds_read_b128 {v(GX+4*i,4)}, v{D3+1} offset:{512*i}")
    job = []
    c = []
    for k in range(16): c.append(f"v_fma_f32 v{TMP+k}, s52, v{ZB+k}, v{ZA+k}")
    for k in range(8): c.append(f"v_cvt_pk_bf16_f32 v{ZF+k}, v{TMP+2*k}, v{TMP+2*k+1}")
    mf = "v_mfma_f32_32x32x16_bf16"
    c.append(f"{mf} {v(YR,16)}, {v(ZF,4)}, {v(FR,4)}, 0")
    c.append(f"{mf} {v(YI,16)}, {v(ZF,4)}, {v(FI,4)}, 0")
    c.append(f"{mf} {v(YR,16)}, {v(ZF+4,4)}, {v(FR+4,4)}, {v(YR,16)}")
    c.append(f"{mf} {v(YI,16)}, {v(ZF+4,4)}, {v(FI+4,4)}, {v(YI,16)}")
    job.append(c)
    c = [f"v_mov_b32 v{t0}, 0"]
    for i in range(16): c.append(f"v_dot2c_f32_bf16 v{t0}, v{GX+i}, v{GW+i}")
    for sh in (1, 2, 4, 8):
        c.append(f"v_add_f32_dpp v{t0}, v{t0}, v{t0} row_shr:{sh} row_mask:0xf bank_mask:0xf bound_ctrl:0")
    c.append(f"v_add_f32_dpp v{t0}, v{t0}, v{t0} row_bcast:15 row_mask:0xa bank_mask:0xf")
    job.append(c)
    c = [f"v_cvt_pk_bf16_f32 v{t0}, v{t0}, v{t0}",
         f"v_and_b32 v{t0}, 0xffff0000, v{t0}",
         f"v_mul_f32 v{t0}, {f2u(-1.4426950408889634)}, v{t0}",
         f"v_exp_f32 v{t0}, v{t0}",
         f"v_mov_b32 v{ang}, s50",
         f"v_add_f32 v{t0}, 1.0, v{t0}",
         f"v_rcp_f32 v{t0}, v{t0}",
         f"v_mov_b32 v{e32}, s51",
         f"v_cvt_pk_bf16_f32 v{t0}, v{t0}, v{t0}",
         f"v_and_b32 v{TMP+16}, 0xffff0000, v{t0}",
         f"v_sub_f32 v{t0}, 1.0, v{TMP+16}",
         f"v_cvt_pk_bf16_f32 v{t0}, v{t0}, v{t0}",
         f"v_and_b32 v{TMP+17}, 0xffff0000, v{t0}",
         f"v_cmp_lt_u32 vcc, 31, v{L}",
         f"s_mov_b32 s58, {GG}",
         f"s_mov_b32 exec_lo, 0x80000000",
         f"s_mov_b32 exec_hi, 0x80000000",
         f"v_cndmask_b32 v{t0}, v{ang}, v{e32}, vcc",
         f"v_lshlrev_b32 v{t0}, 3, v{t0}",
         f"buffer_store_dwordx2 {v(TMP+16,2)}, v{t0}, s[{SWS}:{SWS+3}], s58 offen",
         f"s_mov_b64 exec, -1"]
    job.append(c)
    c = [f"v_sub_f32 v{t0}, v{YR}, v{YR+1}"]
    for k in range(2, 16): c.append(f"v_{'add' if k % 2 == 0 else 'sub'}_f32 v{t0}, v{t0}, v{YR+k}")
    c += [f"v_readlane_b32 s59, v{t0}, 32",
          f"v_mov_b32 v{ang}, 0",
          f"v_add_f32 v{t0}, s59, v{t0}",
          f"v_cvt_pk_bf16_f32 v{UNR}, v{t0}, v{ang}"]
    job.append(c)
    for q in range(4):
        c = []
        for k in range(4 * q, 4 * q + 4):
            t = TMP + 2 * (k % 4)
            c.append(f"v_mul_f32 v{t}, v{YR+k}, v{TC+k}")
            c.append(f"v_mul_f32 v{t+1}, v{YI+k}, v{TC+k}")
            c.append(f"v_fmac_f32 v{t}, v{YI+k}, v{TS+k}")
            c.append(f"v_fma_f32 v{t+1}, -v{YR+k}, v{TS+k}, v{t+1}")
            if k % 2 == 1:
                c.append(f"v_cvt_pk_bf16_f32 v{PR+k//2}, v{t-2}, v{t}")
                c.append(f"v_cvt_pk_bf16_f32 v{PI+k//2}, v{t-1}, v{t+1}")
        job.append(c)
    c = [f"{mf} {v(D3,16)}, {v(PR,4)}, {v(G1,4)}, 0",
         f"{mf} {v(D3,16)}, {v(PI,4)}, {v(G2,4)}, {v(D3,16)}",
         f"{mf} {v(D3,16)}, {v(PR+4,4)}, {v(G1+4,4)}, {v(D3,16)}",
         f"{mf} {v(D3,16)}, {v(PI+4,4)}, {v(G2+4,4)}, {v(D3,16)}"]
    job.append(c)
    c = ["s_nop 7", "s_nop 3"]
    for k in range(8): c.append(f"v_cvt_pk_bf16_f32 v{TMP+k}, v{D3+2*k}, v{D3+2*k+1}")
    c += ["s_cmp_lg_u32 s50, 0", "s_cbranch_scc1 K1_NOROW",
          "s_mov_b32 exec_lo, 0xffff", "s_mov_b32 exec_hi, 0xffff",
          f"buffer_store_dwordx4 {v(TMP,4)}, v{uvo}, s[{SWS}:{SWS+3}], s54 offen",
          f"buffer_store_dwordx4 {v(TMP+4,4)}, v{uvo}, s[{SWS}:{SWS+3}], s54 offen offset:32",
          "s_mov_b64 exec, 1",
          f"buffer_store_short v{UNR}, v{uvo}, s[{SWS}:{SWS+3}], s54 offen offset:1024",
          "s_mov_b64 exec, -1"]
    for k in range(8): c.append(f"v_mov_b32 v{TMP+k}, 0")
    c += [f"v_mov_b32 v{UNR}, 0", "K1_NOROW:"]
    job.append(c)
    assert len(job) <= 12
    n4 = len(tw)
    g1 = stage_groups(); g3 = stage_groups()
    merge(a, stage_groups(), pre)
    stamp(a, 4)
    merge(a, g1[:4], [])
    for t in ga + tw[:n4]: a(t)
    stamp(a, 5)
    a("s_waitcnt vmcnt(4)")
    stamp(a, 6)
    a("s_barrier")
    merge(a, g1[4:] + side_loads, tw[n4:2*n4])
    a("s_waitcnt vmcnt(8)\ns_barrier")
    stamp(a, 7)
    merge(a, stage_groups(), [])
    a("s_waitcnt vmcnt(10)")
    for t in gathers: a(t)
    a("s_waitcnt lgkmcnt(0)")
    merge(a, g3[:4], [])
    a("s_waitcnt vmcnt(4)\ns_barrier")
    merge(a, g3[4:] + stage_groups(), tw[2*n4:3*n4])
    a("s_waitcnt vmcnt(10)\ns_barrier")
    merge(a, stage_groups() + stage_groups(), tw[3*n4:])
    a("s_waitcnt vmcnt(20)\ns_barrier")
    stamp(a, 8)
    a("s_cmp_eq_u32 s50, 0\ns_cselect_b32 s60, 1, 0\ns_mov_b32 s27, 2")
    a.label("K1_PLOOP")
    ci = 0
    for st in range(4):
        g = stage_groups()
        for lo, hi in ((0, 4), (4, 7), (7, 10)):
            for grp in g[lo:hi]:
                for t in grp: a(t)
            if ci < len(job):
                a(f"s_cmp_eq_u32 s60, 0\ns_cbranch_scc1 K1_SK{ci}")
                for t in job[ci]: a(t)
                a.label(f"K1_SK{ci}")
                ci += 1
        a("s_waitcnt vmcnt(20)\ns_barrier")
    a(f"""
    s_mov_b32 s60, 1
    s_mov_b32 s52, 1.0
    s_mov_b32 s54, {RR}
    s_sub_u32 s27, s27, 1
    s_cmp_lg_u32 s27, 0
    s_cbranch_scc1 K1_PLOOP
    """)
    ex = [f"v_and_b32 v{t0}, 15, v{r_}",
          f"v_mul_u32_u24 v{a1}, 528, v{t0}",
          f"v_lshl_add_u32 v{a1}, v{h_}, 7, v{a1}",
          f"v_lshrrev_b32 v{t0}, 4, v{r_}",
          f"v_lshl_add_u32 v{a1}, v{t0}, 3, v{a1}",
          f"s_lshl_b32 s58, s24, 1",
          f"v_add_u32 v{a1}, s58, v{a1}",
          f"v_mul_u32_u24 v{a2}, 528, v{h_}",
          f"v_lshl_add_u32 v{a2}, v{r_}, 4, v{a2}",
          f"s_mul_i32 s58, s24, {4*528}",
          f"v_add_u32 v{a2}, s58, v{a2}",
          f"v_mul_u32_u24 v{uvo}, {ZP}, v{L}",
          f"s_mul_i32 s58, s24, {128*ZP}",
          f"s_and_b32 s59, s2, 7",
          f"s_lshl_b32 s59, s59, 9",
          f"s_add_u32 s58, s58, s59",
          f"s_lshr_b32 s59, s2, 3",
          f"s_lshl_b32 s59, s59, 4",
          f"s_add_u32 s58, s58, s59",
          f"s_add_u32 s58, s58, {ZT}",
          f"s_add_u32 s59, s58, {64*ZP}",
          f"s_add_u32 s57, s58, {128*ZP}"]
    merge(a, stage_groups(), ex)
    a("s_waitcnt vmcnt(20)\ns_barrier")
    for k in range(8):
        e1 = 16 * (k // 4) + 2 * (k % 4)
        a(f"ds_write_b16 v{a1}, v{TMP+k} offset:{16*e1}")
        a(f"ds_write_b16_d16_hi v{a1}, v{TMP+k} offset:{16*e1+16}")
    a(f"""
    s_mov_b64 exec, 1
    ds_write_b16 v{a1}, v{UNR} offset:{16*528}
    ds_write_b16_d16_hi v{a1}, v{UNR} offset:{16*528+8}
    s_mov_b64 exec, -1
    s_waitcnt vmcnt(10) lgkmcnt(0)
    s_barrier
    ds_read_b128 {v(TMP,4)}, v{a2}
    ds_read_b128 {v(TMP+4,4)}, v{a2} offset:{2*528}
    ds_read_b128 {v(TMP+8,4)}, v{a2} offset:{4*528}
    s_waitcnt vmcnt(0)
    s_barrier
    s_waitcnt lgkmcnt(0)
    buffer_store_dwordx4 {v(TMP,4)}, v{uvo}, s[{SWS}:{SWS+3}], s58 offen
    buffer_store_dwordx4 {v(TMP+4,4)}, v{uvo}, s[{SWS}:{SWS+3}], s59 offen
    """)
    if STAMPS:
        stamp(a, 9); stamp(a, 10, True)
        stamp_flush(a, 11, SWS, 0, 3, vt=110)
        a("s_mov_b64 exec, -1")
    a(f"""
    s_cmp_lg_u32 s24, 3
    s_cbranch_scc1 K1_END
    s_mov_b64 exec, 1
    buffer_store_dwordx4 {v(TMP+8,4)}, v{uvo}, s[{SWS}:{SWS+3}], s57 offen
    """)
```

```python
import sys, os
sys.path.insert(0, os.path.dirname(__file__))
from asmlib import *
NAME = "gated_mix__spectral_fnet__mha_block__prompt"
STMOD = {"k1": "", "k2": "", "k3": ""}
def build(kernels, path):
    ref = open(f"cdna_kernels/{NAME}.s.ref").read().split("\n")
    head = [l for l in ref if l.startswith(";") and "@launch" not in l and "Override launch" not in l and "Harness parses" not in l and not l.startswith(";  v1")]
    out = "\n".join(head) + "\n"
    for lab, fn, grid, block, lds, nv in kernels:
        out += f"; @launch kernel={lab} grid=({grid},1,1) block=({block},1,1) lds={lds}\n"
    out += '.amdgcn_target "amdgcn-amd-amdhsa--gfx950"\n.text\n'
    seen = []
    for lab, fn, grid, block, lds, nv in kernels:
        if lab in [x[0] for x in seen]: continue
        seen.append((lab, nv))
        a = Asm(); fn(a)
        body = a.finish()
        mod = os.environ.get("ST_" + lab[:2].upper(), STMOD[lab[:2]])
        if mod: body = "\n".join((l + " " + mod if "buffer_store_dwordx4" in l else l) for l in body.split("\n"))
        out += f".globl {lab}\n.p2align 8\n.type {lab},@function\n{lab}:\n" + body
        print(lab, "auto pads:", a.npad, file=sys.stderr)
    out += 'TEXT_END:\n.section .rodata,"a"\n'
    for lab, nv in seen:
        out += f""".p2align 6
.amdhsa_kernel {lab}
  .amdhsa_next_free_vgpr {nv}
  .amdhsa_next_free_sgpr 96
  .amdhsa_accum_offset {min(256,(nv+3)//4*4)}
  .amdhsa_group_segment_fixed_size 0
  .amdhsa_kernarg_size 96
  .amdhsa_user_sgpr_count 2
  .amdhsa_user_sgpr_kernarg_segment_ptr 1
  .amdhsa_system_sgpr_workgroup_id_x 1
.end_amdhsa_kernel
"""
    open(path, "w").write(out)
if __name__ == "__main__":
    from k1 import gen_k1
    from k2 import gen_k2
    from k3 import gen_k3
    ks = [("k1_kernel", lambda a: gen_k1(a, side=True), 256, 512, 163840, 256),
          ("k2_kernel", gen_k2, 256, 512, 131072, 256),
          ("k3_kernel", gen_k3, 256, 512, 163840, 256)]
    if os.environ.get("FUSE", "1") == "1":
        from k23 import gen_k23
        ks = ks[:1] + [("k2_kernel", gen_k23, 256, 512, 163840, 256)]
    build(ks, sys.argv[1] if len(sys.argv) > 1 else f"cdna_kernels/{NAME}.s")
```

```python
from asmlib import *
from layout import *
import math

def merge(a, groups, fill):
    n = len(groups); k = 0
    for i, g in enumerate(groups):
        for t in g: a(t)
        e = (len(fill) * (i + 1)) // n
        for t in fill[k:e]: a(t)
        k = e

def gen_k1(a, side=True):
    NTX = os.environ.get("NTX", ""); NTW = os.environ.get("NTW", ""); PF = os.environ.get("PF", "")
    ROT = {"0": "s_mov_b32 s41, 0", "1": "s_and_b32 s41, s4, 7", "2": "s_mov_b32 s41, s4", "3": "s_add_u32 s41, s4, s5\n s_and_b32 s41, s41, 15",
           "4": "s_mov_b32 s41, s5",
           "7": "s_lshl_b32 s41, s4, 1\n s_and_b32 s41, s41, 15",
           "8": "s_lshl_b32 s41, s2, 1\n s_and_b32 s41, s41, 15",
           "9": "s_lshl_b32 s41, s4, 2\n s_and_b32 s41, s41, 15",
           "5": "s_lshl_b32 s41, s5, 1\n s_add_u32 s41, s41, s4\n s_lshl_b32 s41, s41, 1\n s_and_b32 s41, s41, 15",
           "6": "s_lshl_b32 s41, s5, 1\n s_add_u32 s41, s41, s4\n s_lshl_b32 s41, s41, 1\n s_bfe_u32 s40, s2, 0x20001\n s_add_u32 s41, s41, s40\n s_and_b32 s40, s2, 1\n s_add_u32 s41, s41, s40\n s_and_b32 s41, s41, 15"}[os.environ.get("ROT", "7")]
    SX, SW, SWS, SG = 8, 12, 16, 20
    a(f"""
    s_cmp_ge_u32 s2, 256
    s_cbranch_scc1 K1_END
    s_load_dwordx2 s[{SX}:{SX+1}], s[0:1], {A_X}
    s_load_dwordx2 s[{SW}:{SW+1}], s[0:1], {B_WQKV}
    s_load_dwordx2 s[{SWS}:{SWS+1}], s[0:1], {WS}
    s_load_dwordx2 s[{SG}:{SG+1}], s[0:1], {GATE}
    s_load_dwordx2 s[88:89], s[0:1], {B_WO}
    v_lshrrev_b32 v1, 6, v0
    v_and_b32 v99, 63, v0
    s_mov_b32 s{SX+2}, 0x400000
    v_readfirstlane_b32 s3, v1
    s_mov_b32 s{SX+3}, 0x20000
    s_mov_b32 s{SW+2}, 0x600000
    s_mov_b32 s{SW+3}, 0x20000
    s_mov_b32 s{SWS+2}, {WS_USED}
    s_mov_b32 s{SWS+3}, 0x20000
    s_mov_b32 s{SG+2}, 0x800
    s_mov_b32 s{SG+3}, 0x20000
    s_mov_b32 s90, 0x200000
    s_mov_b32 s91, 0x20000
    s_and_b32 s4, s2, 1
    s_lshl_b32 s4, s4, 3
    s_bfe_u32 s5, s2, 0x30003
    s_add_u32 s4, s4, s5
    s_bfe_u32 s5, s2, 0x20001
    s_lshl_b32 s5, s5, 2
    s_lshr_b32 s6, s2, 6
    s_add_u32 s5, s5, s6
    s_cmp_ge_u32 s3, 4
    s_cbranch_scc1 K1_PROD
    """)
    L = 99
    stamp(a, 0, True); stamp(a, 1)
    XF = lambda b, tt: 96 + 4 + 8 * b + 4 * tt
    WF = lambda b, sg: 116 + 12 * b + 4 * sg
    XA = 140; WA = 144; T0 = 146
    a(f"""
    s_setprio 2
    s_and_b32 s24, s3, 1
    s_lshr_b32 s25, s3, 1
    v_and_b32 v{T0}, 31, v{L}       ; r
    v_lshrrev_b32 v{T0+1}, 5, v{L}  ; h
    v_bfe_u32 v{T0+2}, v{L}, 1, 3   ; (r>>1)&7
    v_xor_b32 v{T0+2}, v{T0+2}, v{T0+1}
    v_lshlrev_b32 v{T0+2}, 4, v{T0+2}
    v_lshl_or_b32 v{T0+2}, v{T0}, 7, v{T0+2}
    s_lshl_b32 s26, s24, 13
    v_add_u32 v{XA}, s26, v{T0+2}
    v_xor_b32 v{XA+1}, 32, v{XA}
    v_xor_b32 v{XA+2}, 64, v{XA}
    v_xor_b32 v{XA+3}, 96, v{XA}
    ; W address
    v_bfe_u32 v{T0+2}, v{L}, 2, 2   ; rr
    v_lshl_or_b32 v{T0+2}, v{T0+1}, 3, v{T0+2}
    v_lshlrev_b32 v{T0+2}, 7, v{T0+2}
    v_bfe_u32 v{T0+3}, v{L}, 3, 1   ; (rr>>1)&1
    v_xor_b32 v{T0+3}, s25, v{T0+3}
    v_lshl_or_b32 v{T0+2}, v{T0+3}, 6, v{T0+2}
    v_bfe_u32 v{T0+3}, v{L}, 4, 1   ; g2
    v_lshl_or_b32 v{T0+2}, v{T0+3}, 5, v{T0+2}
    v_and_b32 v{T0+3}, 3, v{L}
    v_lshl_or_b32 v{T0+2}, v{T0+3}, 3, v{T0+2}
    v_add_u32 v{WA}, 0x10000, v{T0+2}
    v_add_u32 v{WA+1}, 0x1c000, v{T0+2}
    v_lshlrev_b32 v{T0}, 4, v{L}
    v_and_b32 v{T0+1}, 0x330, v{T0}
    v_bfe_u32 v{T0+2}, v{L}, 2, 1
    v_lshl_or_b32 v{T0+1}, v{T0+2}, 7, v{T0+1}
    v_bfe_u32 v{T0+2}, v{L}, 3, 1
    v_lshl_or_b32 v{T0+1}, v{T0+2}, 6, v{T0+1}
    """)
    if os.environ.get("CPF", "1") == "1":
        a(f"""
        s_getpc_b64 s[36:37]
        K1_PC:
        s_lshr_b32 s28, s2, 3
        s_lshl_b32 s28, s28, 2
        s_add_u32 s28, s28, s3
        s_lshl_b32 s28, s28, 9
        v_lshlrev_b32 v150, 7, v{L}
        v_add_u32 v150, s28, v150
        v_min_u32 v150, TEXT_END-K1_PC-4, v150
        s_mov_b64 exec, 15
        global_load_dword v151, v150, s[36:37]
        s_mov_b64 exec, -1
        """)
    PX, PW = 150, 151
    def pf(lab, rem):
        if not PF: return
        a(f"""
        s_cmp_eq_u32 s{rem}, 0
        s_cbranch_scc1 {lab}
        buffer_load_dword v152, v{PX}, s[{SX}:{SX+3}], s35 offen
        buffer_load_dword v153, v{PW}, s[{SW}:{SW+3}], s36 offen
        s_sub_u32 s{rem}, s{rem}, 1
        s_add_u32 s35, s35, 1024
        s_add_u32 s36, s36, {8*393216}
        {lab}:
        """)
    if PF:
        a(f"""
        s_lshr_b32 s28, s2, 3
        s_and_b32 s29, s2, 1
        s_lshl_b32 s29, s29, 5
        s_add_u32 s29, s29, s28
        s_lshl_b32 s35, s29, 16
        v_and_b32 v{PX}, 31, v{L}
        v_lshlrev_b32 v{PX}, 11, v{PX}
        v_lshrrev_b32 v{PW}, 5, v{L}
        v_lshl_or_b32 v{PX}, v{PW}, 7, v{PX}
        v_lshrrev_b32 v{PW}, 4, v{L}
        v_mul_u32_u24 v{PW}, 6144, v{PW}
        v_bfe_u32 v152, v{L}, 2, 2
        v_min_u32 v152, 2, v152
        v_lshl_add_u32 v{PW}, v152, 11, v{PW}
        v_and_b32 v152, 3, v{L}
        v_lshl_add_u32 v{PW}, v152, 7, v{PW}
        s_mul_i32 s36, s28, {4*6144}
        s_bfe_u32 s29, s2, 0x20001
        s_lshl_b32 s29, s29, 9
        s_add_u32 s36, s36, s29
        s_add_u32 s29, s3, 1
        s_lshl_b32 s28, s29, 8
        s_add_u32 s35, s35, s28
        s_mul_i32 s28, s29, {2*393216}
        s_add_u32 s36, s36, s28
        s_cmp_lt_u32 s3, 2
        s_cselect_b32 s34, 2, 0
        s_sub_u32 s33, 4, s3
        s_cmp_lt_u32 s3, 2
        s_cselect_b32 s33, 0, s33        ; A points: w2: 2, w3: 1
        """)
    for i in range(96): a(f"v_mov_b32 v{i}, 0")
    def reads(slot, st, b):
        r = []
        for tt in range(2):
            r.append(f"ds_read_b128 {v(XF(b,tt),4)}, v{XA+st} offset:{slot*16384 + tt*4096}")
        for sg in range(3):
            for sec in range(2):
                r.append(f"ds_read_b64_tr_b16 {v(WF(b,sg)+2*sec,2)}, v{WA+(slot>>1)} offset:{(slot&1)*24576 + sg*8192 + st*2048 + sec*512}")
        return [[r[0], r[2], r[3]], [r[1], r[4], r[5]], [r[6], r[7]]]
    def mfmas(b):
        m = []
        for sg in range(3):
            for tt in range(2):
                acc = v(16 * (tt * 3 + sg), 16)
                if sg < 2: m.append(f"v_mfma_f32_32x32x16_bf16 {acc}, {v(WF(b,sg),4)}, {v(XF(b,tt),4)}, {acc}")
                else:      m.append(f"v_mfma_f32_32x32x16_bf16 {acc}, {v(XF(b,tt),4)}, {v(WF(b,sg),4)}, {acc}")
        return m
    a("s_mov_b32 s27, 4")
    a(f"""
    s_or_b32 s28, s2, s3
    s_cbranch_scc1 K1_NOZ
    s_mov_b32 s28, {FLG}
    s_waitcnt lgkmcnt(0)
    buffer_store_dwordx4 v[0:3], v{T0}, s[{SWS}:{SWS+3}], s28 offen
    buffer_store_dwordx4 v[0:3], v{T0}, s[{SWS}:{SWS+3}], s28 offen offset:1024
    K1_NOZ:
    """)
    if PF:
        a("s_waitcnt lgkmcnt(0)")
        if int(PF) > 1: a(f"s_sleep {int(PF)}")
        pf("K1_PF0", 34)
    stamp(a, 2)
    a("s_barrier")
    stamp(a, 3)
    for g in reads(0, 0, 0):
        for t in g: a(t)
    a(".p2align 6")
    a.label("K1_CLOOP")
    for slot in range(4):
        for st in range(4):
            b = st & 1
            m = mfmas(b)
            nslot, nst = (slot, st + 1) if st < 3 else ((slot + 1) & 3, 0)
            rd = reads(nslot, nst, b ^ 1)
            a("s_waitcnt lgkmcnt(0)")
            a(m[0])
            if st == 3:
                if slot == 3:
                    a("s_sub_u32 s27, s27, 1")
                    a("s_cmp_eq_u32 s27, 0")
                    a("s_cbranch_scc1 K1_CTAIL")
                a("s_barrier")
            for i in range(3):
                for t in rd[i]: a(t)
                a(m[i + 1])
            if st == 0 and slot == 0: pf("K1_PFA", 33)
            if st == 0 and slot == 2: pf("K1_PFB", 34)
            a(m[4])
            a(m[5])
    a("s_branch K1_CLOOP")
    a.label("K1_CTAIL")
    for t in mfmas(1)[1:]: a(t)
    stamp(a, 4)
    qs = math.log2(math.e) / math.sqrt(32.0)
    a(f"""
    s_lshl_b32 s28, s5, 1
    s_add_u32 s28, s28, s25
    s_lshl_b32 s28, s28, 6
    s_lshl_b32 s29, s4, 2
    s_add_u32 s28, s28, s29
    s_lshl_b32 s29, s24, 1
    s_add_u32 s28, s28, s29
    s_lshl_b32 s29, s28, 11          ; Q offset
    s_lshl_b32 s30, s28, 12
    s_add_u32 s30, s30, {KV}
    s_add_u32 s31, s30, 4096
    s_mov_b32 s32, {f2u(qs)}
    """)
    PK = 100
    n = 0
    for sg in range(3):
        for tt in range(2):
            base = 16 * (tt * 3 + sg)
            pk = PK + 8 * (n % 4); n += 1
            if sg == 0:
                for i in range(16): a(f"v_mul_f32 v{base+i}, s32, v{base+i}")
            for j in range(2):
                for i in range(4):
                    a(f"v_cvt_pk_bf16_f32 v{pk+4*j+i}, v{base+8*j+2*i}, v{base+8*j+2*i+1}")
                if sg == 0: so, off = 29, tt * 2048 + j * 1024
                else: so, off = 30 + tt, (sg - 1) * 2048 + j * 1024
                a(f"buffer_store_dwordx4 {v(pk+4*j,4)}, v{T0+(sg==1)}, s[{SWS}:{SWS+3}], s{so} offen offset:{off}")
    stamp(a, 5)
    if STAMPS: a("s_waitcnt vmcnt(0)")
    stamp(a, 6); stamp(a, 7, True)
    stamp_flush(a, 8, SWS, 0, 3)
    a("s_endpgm")

    a(".p2align 6")
    a.label("K1_PROD")
    VO = 100
    stamp(a, 0, True); stamp(a, 1)
    T = 88
    a(f"""
    s_sub_u32 s24, s3, 4             ; p
    v_lshrrev_b32 v{T}, 3, v{L}      ; i>>3
    v_and_b32 v{T+1}, 7, v{L}        ; i&7
    v_lshrrev_b32 v{T+2}, 4, v{L}    ; i>>4
    v_xor_b32 v{T+3}, v{T+1}, v{T+2}
    v_lshlrev_b32 v{T+3}, 4, v{T+3}
    v_lshl_or_b32 v{T+3}, v{T}, 11, v{T+3}
    s_lshl_b32 s25, s4, 18           ; rt*128*2048
    s_lshl_b32 s26, s24, 16          ; p*32*2048
    s_add_u32 s25, s25, s26
    v_add_u32 v{VO}, s25, v{T+3}
    v_xor_b32 v{VO+1}, 64, v{VO}
    v_add_u32 v{VO+1}, {16384-1024}, v{VO+1}
    v_add_u32 v{VO+2}, {2*(16384-1024)}, v{VO}
    v_add_u32 v{VO+3}, {2*(16384-1024)}, v{VO+1}
    ; W
    v_and_b32 v{T+2}, 1, v{T+2}
    v_lshlrev_b32 v{T+2}, 2, v{T+2}
    v_xor_b32 v{T+3}, v{T+1}, v{T+2}
    v_lshlrev_b32 v{T+3}, 4, v{T+3}
    s_movk_i32 s26, 6144
    v_mad_u32_u24 v{T+3}, v{T}, s26, v{T+3}
    s_lshl_b32 s27, s5, 7            ; cg*128
    s_mul_i32 s28, s24, 6
    """)
    for u in range(6):
        a(f"""
        s_add_u32 s29, s28, {u}
        s_and_b32 s30, s29, 7
        s_mul_i32 s30, s30, 49152
        s_lshr_b32 s29, s29, 3
        s_lshl_b32 s29, s29, 11
        s_add_u32 s29, s29, s30
        s_add_u32 s29, s29, s27
        s_sub_u32 s29, s29, {1024*(u%3)}
        v_add_u32 v{VO+4+u}, s29, v{T+3}
        """)
    a(f"""
    {ROT}
    s_lshl_b32 s40, s41, 7
    s_mul_i32 s41, s41, 393216
    s_lshl_b32 s42, s24, 12
    s_mul_i32 s43, s24, 6144
    s_add_u32 s43, s43, 0x10000
    s_mov_b32 s44, s42
    s_mov_b32 s45, s43
    s_add_u32 s46, s42, 0x10000
    """)
    stamp(a, 2)
    a("s_waitcnt lgkmcnt(0)")
    stamp(a, 3)
    def stage_groups():
        g = []
        g.append(["s_mov_b32 m0, s42", "s_add_u32 s47, s43, 3072",
                  f"buffer_load_dwordx4 v{VO}, s[{SX}:{SX+3}], s40 offen{NTX} lds"])
        for j in range(1, 4):
            g.append([f"buffer_load_dwordx4 v{VO+j}, s[{SX}:{SX+3}], s40 offen offset:{1024*j}{NTX} lds"])
        for u in range(6):
            pre = []
            if u == 0: pre = ["s_mov_b32 m0, s43", "s_add_u32 s42, s42, 16384"]
            if u == 3: pre = ["s_mov_b32 m0, s47", "s_add_u32 s43, s43, 24576"]
            g.append(pre + [f"buffer_load_dwordx4 v{VO+4+u}, s[{SW}:{SW+3}], s41 offen offset:{1024*(u%3)}{NTW} lds"])
        g[-1] += ["s_add_u32 s40, s40, 128", "s_add_u32 s41, s41, 393216",
                  "s_cmp_eq_u32 s40, 2048", "s_cselect_b32 s40, 0, s40", "s_cselect_b32 s41, 0, s41",
                  "s_cmp_eq_u32 s42, s46", "s_cselect_b32 s42, s44, s42", "s_cselect_b32 s43, s45, s43"]
        return g
    if not side:
        for i in range(3): merge(a, stage_groups(), [])
        a("s_waitcnt vmcnt(20)\ns_barrier")
        a("s_mov_b32 s27, 13")
        a.label("K1_PLOOP")
        merge(a, stage_groups(), [])
        a("""s_waitcnt vmcnt(20)
        s_barrier
        s_sub_u32 s27, s27, 1
        s_cmp_lg_u32 s27, 0
        s_cbranch_scc1 K1_PLOOP
        s_waitcnt vmcnt(10)
        s_barrier
        s_waitcnt vmcnt(0)
        s_barrier""")
    else:
        from k1side import gen_side
        gen_side(a, stage_groups, merge, dict(SX=SX, SWS=SWS, SG=SG, L=L))
    a.label("K1_END")
    a("s_endpgm")
```

```python
from asmlib import *
from layout import *

def gen_side(a, stage_groups, merge, R):
    SX, SWS, SG, L = R["SX"], R["SWS"], R["SG"], R["L"]
    ZA, ZB, ZF, FR, FI, G1, G2, PR, PI = 0, 16, 32, 40, 48, 56, 64, 72, 80
    M = 88
    TC, TS, YR, YI, TMP, D3, GX, GW = 112, 128, 144, 160, 176, 208, 224, 240
    UNR = 110
    r_, h_, l16, e32, ang, a1, a2, a2s, gxa, uvo, t0 = [M + i for i in range(11)]
    pre = f"""
    s_and_b32 s50, s2, 7
    s_lshl_b32 s50, s50, 2
    s_add_u32 s50, s50, s24
    s_lshl_b32 s50, s50, 5
    s_lshr_b32 s51, s2, 3
    s_add_u32 s50, s50, s51
    s_sub_u32 s51, 2048, s50
    s_cmp_eq_u32 s50, 0
    s_cselect_b32 s51, 1024, s51
    s_mov_b32 s52, -1.0
    s_mov_b32 s54, {RR + 2048}
    s_add_u32 s53, s44, 49152
    s_lshl_b32 s55, s50, 11
    s_lshl_b32 s56, s51, 11
    s_sub_u32 s56, s56, 2048
    v_lshlrev_b32 v{l16}, 4, v{L}
    v_and_b32 v{r_}, 31, v{L}
    v_lshrrev_b32 v{h_}, 5, v{L}
    v_lshlrev_b32 v{gxa}, 4, v{r_}
    """.strip().split("\n")
    side_loads = [["s_mov_b32 m0, s53", "s_nop 0", f"buffer_load_dwordx4 v{l16}, s[{SX}:{SX+3}], s55 offen lds"],
                  [f"buffer_load_dwordx4 v{l16}, s[{SX}:{SX+3}], s55 offen offset:1024 lds"],
                  [f"buffer_load_dwordx4 v{l16}, s[{SX}:{SX+3}], s56 offen offset:2048 lds"],
                  [f"buffer_load_dwordx4 v{l16}, s[{SX}:{SX+3}], s56 offen offset:3072 lds"]]
    for i in range(4):
        side_loads.append([f"buffer_load_dwordx4 {v(GW+4*i,4)}, v{gxa}, s[{SG}:{SG+3}], 0 offen offset:{512*i}"])
    tw = []
    E = tw.append
    E(f"v_and_b32 v{t0}, 0x13, v{r_}")
    E(f"v_bfe_u32 v{ang}, v{r_}, 2, 1")
    E(f"v_lshl_or_b32 v{t0}, v{ang}, 3, v{t0}")
    E(f"v_bfe_u32 v{ang}, v{r_}, 3, 1")
    E(f"v_lshl_or_b32 v{t0}, v{ang}, 2, v{t0}")
    E(f"v_cvt_f32_u32 v{t0}, v{t0}")
    E(f"v_cvt_f32_u32 v{a1}, v{h_}")
    E(f"v_mul_f32 v{e32}, {f2u(-1/32)}, v{t0}")
    E(f"v_mul_f32 v{ang}, v{e32}, v{a1}")
    E(f"v_mul_f32 v{ang}, {f2u(8.0)}, v{ang}")
    def table(step_reg, base_reg, offs, cdst, sdst, pack):
        for k in range(16):
            t = TMP + 2 * (k % 4)
            if offs[k] == 0: src = base_reg
            else:
                E(f"v_fmamk_f32 v{TMP+8}, v{step_reg}, {f2u(float(offs[k]))}, v{base_reg}"); src = TMP + 8
            if pack:
                E(f"v_cos_f32 v{t}, v{src}"); E(f"v_sin_f32 v{t+1}, v{src}")
                if k % 2 == 1:
                    E(f"v_cvt_pk_bf16_f32 v{cdst+k//2}, v{t-2}, v{t}")
                    E(f"v_cvt_pk_bf16_f32 v{sdst+k//2}, v{t-1}, v{t+1}")
            else:
                E(f"v_cos_f32 v{cdst+k}, v{src}"); E(f"v_sin_f32 v{sdst+k}, v{src}")
    table(e32, ang, [16 * (k // 8) + k % 8 for k in range(16)], FR, FI, True)
    dofs = [8 * (k // 4) + k % 4 for k in range(16)]
    E(f"v_mul_f32 v{e32}, {f2u(1/1024)}, v{t0}")
    E(f"v_mul_f32 v{ang}, v{e32}, v{a1}")
    E(f"v_mul_f32 v{ang}, 4.0, v{ang}")
    table(e32, ang, dofs, TC, TS, False)
    E(f"v_and_b32 v{t0}, 15, v{r_}")
    E(f"v_cvt_f32_u32 v{t0}, v{t0}")
    E(f"v_mul_f32 v{e32}, {f2u(1/32)}, v{t0}")
    E(f"v_mul_f32 v{ang}, v{e32}, v{a1}")
    E(f"v_mul_f32 v{ang}, 4.0, v{ang}")
    E(f"v_lshrrev_b32 v{t0}, 4, v{r_}")
    E(f"v_cvt_f32_u32 v{t0}, v{t0}")
    E(f"v_fmamk_f32 v{ang}, v{t0}, {f2u(0.25)}, v{ang}")
    table(e32, ang, dofs, G1, G2, True)
    ga = []
    E = ga.append
    for i in range(0, 32, 2): E(f"v_mov_b64 {v(ZA+i,2)}, 0")
    E(f"v_lshlrev_b32 v{t0}, 1, v{r_}")
    E(f"v_lshl_or_b32 v{t0}, v{h_}, 9, v{t0}")
    E(f"v_add_u32 v{D3}, s53, v{t0}")
    E(f"s_add_u32 s57, s53, {4096 - 64*23}")
    E(f"v_sub_u32 v{a2}, s57, v{t0}")
    E(f"v_cmp_eq_u32 vcc, 0, v{L}")
    E(f"v_subrev_u32 v{t0}, 2048, v{a2}")
    E(f"v_lshl_or_b32 v{D3+1}, v{h_}, 11, v{gxa}")
    E(f"v_cndmask_b32 v{a2s}, v{a2}, v{t0}, vcc")
    E(f"v_add_u32 v{D3+1}, s53, v{D3+1}")
    E(f"v_lshlrev_b32 v{uvo}, 6, v{r_}")
    E(f"v_lshl_or_b32 v{uvo}, v{h_}, 4, v{uvo}")
    gathers = []
    for k in range(16):
        d = 16 * (k // 8) + k % 8
        gathers.append(f"ds_read_u16_d16_hi v{ZA+k}, v{D3} offset:{64*d}")
        gathers.append(f"ds_read_u16_d16_hi v{ZB+k}, v{a2s if k == 0 else a2} offset:{64*(23-d)}")
    for i in range(4):
        gathers.append(f"ds_read_b128 {v(GX+4*i,4)}, v{D3+1} offset:{512*i}")
    job = []
    c = []
    for k in range(16): c.append(f"v_fma_f32 v{TMP+k}, s52, v{ZB+k}, v{ZA+k}")
    for k in range(8): c.append(f"v_cvt_pk_bf16_f32 v{ZF+k}, v{TMP+2*k}, v{TMP+2*k+1}")
    mf = "v_mfma_f32_32x32x16_bf16"
    c.append(f"{mf} {v(YR,16)}, {v(ZF,4)}, {v(FR,4)}, 0")
    c.append(f"{mf} {v(YI,16)}, {v(ZF,4)}, {v(FI,4)}, 0")
    c.append(f"{mf} {v(YR,16)}, {v(ZF+4,4)}, {v(FR+4,4)}, {v(YR,16)}")
    c.append(f"{mf} {v(YI,16)}, {v(ZF+4,4)}, {v(FI+4,4)}, {v(YI,16)}")
    job.append(c)
    c = [f"v_mov_b32 v{t0}, 0"]
    for i in range(16): c.append(f"v_dot2c_f32_bf16 v{t0}, v{GX+i}, v{GW+i}")
    for sh in (1, 2, 4, 8):
        c.append(f"v_add_f32_dpp v{t0}, v{t0}, v{t0} row_shr:{sh} row_mask:0xf bank_mask:0xf bound_ctrl:0")
    c.append(f"v_add_f32_dpp v{t0}, v{t0}, v{t0} row_bcast:15 row_mask:0xa bank_mask:0xf")
    job.append(c)
    c = [f"v_cvt_pk_bf16_f32 v{t0}, v{t0}, v{t0}",
         f"v_and_b32 v{t0}, 0xffff0000, v{t0}",
         f"v_mul_f32 v{t0}, {f2u(-1.4426950408889634)}, v{t0}",
         f"v_exp_f32 v{t0}, v{t0}",
         f"v_mov_b32 v{ang}, s50",
         f"v_add_f32 v{t0}, 1.0, v{t0}",
         f"v_rcp_f32 v{t0}, v{t0}",
         f"v_mov_b32 v{e32}, s51",
         f"v_cvt_pk_bf16_f32 v{t0}, v{t0}, v{t0}",
         f"v_and_b32 v{TMP+16}, 0xffff0000, v{t0}",
         f"v_sub_f32 v{t0}, 1.0, v{TMP+16}",
         f"v_cvt_pk_bf16_f32 v{t0}, v{t0}, v{t0}",
         f"v_and_b32 v{TMP+17}, 0xffff0000, v{t0}",
         f"v_cmp_lt_u32 vcc, 31, v{L}",
         f"s_mov_b32 s58, {GG}",
         f"s_mov_b32 exec_lo, 0x80000000",
         f"s_mov_b32 exec_hi, 0x80000000",
         f"v_cndmask_b32 v{t0}, v{ang}, v{e32}, vcc",
         f"v_lshlrev_b32 v{t0}, 3, v{t0}",
         f"buffer_store_dwordx2 {v(TMP+16,2)}, v{t0}, s[{SWS}:{SWS+3}], s58 offen",
         f"s_mov_b64 exec, -1"]
    job.append(c)
    c = [f"v_sub_f32 v{t0}, v{YR}, v{YR+1}"]
    for k in range(2, 16): c.append(f"v_{'add' if k % 2 == 0 else 'sub'}_f32 v{t0}, v{t0}, v{YR+k}")
    c += [f"v_readlane_b32 s59, v{t0}, 32",
          f"v_mov_b32 v{ang}, 0",
          f"v_add_f32 v{t0}, s59, v{t0}",
          f"v_cvt_pk_bf16_f32 v{UNR}, v{t0}, v{ang}"]
    job.append(c)
    for q in range(4):
        c = []
        for k in range(4 * q, 4 * q + 4):
            t = TMP + 2 * (k % 4)
            c.append(f"v_mul_f32 v{t}, v{YR+k}, v{TC+k}")
            c.append(f"v_mul_f32 v{t+1}, v{YI+k}, v{TC+k}")
            c.append(f"v_fmac_f32 v{t}, v{YI+k}, v{TS+k}")
            c.append(f"v_fma_f32 v{t+1}, -v{YR+k}, v{TS+k}, v{t+1}")
            if k % 2 == 1:
                c.append(f"v_cvt_pk_bf16_f32 v{PR+k//2}, v{t-2}, v{t}")
                c.append(f"v_cvt_pk_bf16_f32 v{PI+k//2}, v{t-1}, v{t+1}")
        job.append(c)
    c = [f"{mf} {v(D3,16)}, {v(PR,4)}, {v(G1,4)}, 0",
         f"{mf} {v(D3,16)}, {v(PI,4)}, {v(G2,4)}, {v(D3,16)}",
         f"{mf} {v(D3,16)}, {v(PR+4,4)}, {v(G1+4,4)}, {v(D3,16)}",
         f"{mf} {v(D3,16)}, {v(PI+4,4)}, {v(G2+4,4)}, {v(D3,16)}"]
    job.append(c)
    c = ["s_nop 7", "s_nop 3"]
    for k in range(8): c.append(f"v_cvt_pk_bf16_f32 v{TMP+k}, v{D3+2*k}, v{D3+2*k+1}")
    c += ["s_cmp_lg_u32 s50, 0", "s_cbranch_scc1 K1_NOROW",
          "s_mov_b32 exec_lo, 0xffff", "s_mov_b32 exec_hi, 0xffff",
          f"buffer_store_dwordx4 {v(TMP,4)}, v{uvo}, s[{SWS}:{SWS+3}], s54 offen",
          f"buffer_store_dwordx4 {v(TMP+4,4)}, v{uvo}, s[{SWS}:{SWS+3}], s54 offen offset:32",
          "s_mov_b64 exec, 1",
          f"buffer_store_short v{UNR}, v{uvo}, s[{SWS}:{SWS+3}], s54 offen offset:1024",
          "s_mov_b64 exec, -1"]
    for k in range(8): c.append(f"v_mov_b32 v{TMP+k}, 0")
    c += [f"v_mov_b32 v{UNR}, 0", "K1_NOROW:"]
    job.append(c)
    assert len(job) <= 12
    n4 = len(tw)
    g1 = stage_groups(); g3 = stage_groups()
    merge(a, stage_groups(), pre)
    stamp(a, 4)
    merge(a, g1[:4], [])
    for t in ga + tw[:n4]: a(t)
    stamp(a, 5)
    a("s_waitcnt vmcnt(4)")
    stamp(a, 6)
    a("s_barrier")
    merge(a, g1[4:] + side_loads, tw[n4:2*n4])
    a("s_waitcnt vmcnt(8)\ns_barrier")
    stamp(a, 7)
    merge(a, stage_groups(), [])
    a("s_waitcnt vmcnt(10)")
    for t in gathers: a(t)
    a("s_waitcnt lgkmcnt(0)")
    merge(a, g3[:4], [])
    a("s_waitcnt vmcnt(4)\ns_barrier")
    merge(a, g3[4:] + stage_groups(), tw[2*n4:3*n4])
    a("s_waitcnt vmcnt(10)\ns_barrier")
    merge(a, stage_groups() + stage_groups(), tw[3*n4:])
    a("s_waitcnt vmcnt(20)\ns_barrier")
    stamp(a, 8)
    a("s_cmp_eq_u32 s50, 0\ns_cselect_b32 s60, 1, 0\ns_mov_b32 s27, 2")
    a.label("K1_PLOOP")
    ci = 0
    for st in range(4):
        g = stage_groups()
        for lo, hi in ((0, 4), (4, 7), (7, 10)):
            for grp in g[lo:hi]:
                for t in grp: a(t)
            if ci < len(job):
                a(f"s_cmp_eq_u32 s60, 0\ns_cbranch_scc1 K1_SK{ci}")
                for t in job[ci]: a(t)
                a.label(f"K1_SK{ci}")
                ci += 1
        a("s_waitcnt vmcnt(20)\ns_barrier")
    a(f"""
    s_mov_b32 s60, 1
    s_mov_b32 s52, 1.0
    s_mov_b32 s54, {RR}
    s_sub_u32 s27, s27, 1
    s_cmp_lg_u32 s27, 0
    s_cbranch_scc1 K1_PLOOP
    """)
    ex = [f"v_and_b32 v{t0}, 15, v{r_}",
          f"v_mul_u32_u24 v{a1}, 528, v{t0}",
          f"v_lshl_add_u32 v{a1}, v{h_}, 7, v{a1}",
          f"v_lshrrev_b32 v{t0}, 4, v{r_}",
          f"v_lshl_add_u32 v{a1}, v{t0}, 3, v{a1}",
          f"s_lshl_b32 s58, s24, 1",
          f"v_add_u32 v{a1}, s58, v{a1}",
          f"v_mul_u32_u24 v{a2}, 528, v{h_}",
          f"v_lshl_add_u32 v{a2}, v{r_}, 4, v{a2}",
          f"s_mul_i32 s58, s24, {4*528}",
          f"v_add_u32 v{a2}, s58, v{a2}",
          f"v_mul_u32_u24 v{uvo}, {ZP}, v{L}",
          f"s_mul_i32 s58, s24, {128*ZP}",
          f"s_and_b32 s59, s2, 7",
          f"s_lshl_b32 s59, s59, 9",
          f"s_add_u32 s58, s58, s59",
          f"s_lshr_b32 s59, s2, 3",
          f"s_lshl_b32 s59, s59, 4",
          f"s_add_u32 s58, s58, s59",
          f"s_add_u32 s58, s58, {ZT}",
          f"s_add_u32 s59, s58, {64*ZP}",
          f"s_add_u32 s57, s58, {128*ZP}"]
    merge(a, stage_groups(), ex)
    a("s_waitcnt vmcnt(20)\ns_barrier")
    WPRE = f"""; first touch of wo (2 KB per wave) so that the next launch finds it on the chip
    s_lshl_b32 s92, s2, 2
    s_add_u32 s92, s92, s24
    s_lshl_b32 s92, s92, 11
    v_lshlrev_b32 v100, 7, v{L}
    s_mov_b64 exec, 0xffff
    buffer_load_dword v101, v100, s[88:91], s92 offen
    s_mov_b64 exec, -1""" if os.environ.get("MPF", "1") == "1" else ""
    for k in range(8):
        e1 = 16 * (k // 4) + 2 * (k % 4)
        a(f"ds_write_b16 v{a1}, v{TMP+k} offset:{16*e1}")
        a(f"ds_write_b16_d16_hi v{a1}, v{TMP+k} offset:{16*e1+16}")
    a(f"""
    s_mov_b64 exec, 1
    ds_write_b16 v{a1}, v{UNR} offset:{16*528}
    ds_write_b16_d16_hi v{a1}, v{UNR} offset:{16*528+8}
    s_mov_b64 exec, -1
    s_waitcnt vmcnt(10) lgkmcnt(0)
    s_barrier
    ds_read_b128 {v(TMP,4)}, v{a2}
    ds_read_b128 {v(TMP+4,4)}, v{a2} offset:{2*528}
    ds_read_b128 {v(TMP+8,4)}, v{a2} offset:{4*528}
    s_waitcnt vmcnt(0)
    s_barrier
    {WPRE}
    s_waitcnt lgkmcnt(0)
    buffer_store_dwordx4 {v(TMP,4)}, v{uvo}, s[{SWS}:{SWS+3}], s58 offen
    buffer_store_dwordx4 {v(TMP+4,4)}, v{uvo}, s[{SWS}:{SWS+3}], s59 offen
    """)
    if STAMPS:
        stamp(a, 9); stamp(a, 10, True)
        stamp_flush(a, 11, SWS, 0, 3, vt=110)
        a("s_mov_b64 exec, -1")
    a(f"""
    s_cmp_lg_u32 s24, 3
    s_cbranch_scc1 K1_END
    s_mov_b64 exec, 1
    buffer_store_dwordx4 {v(TMP+8,4)}, v{uvo}, s[{SWS}:{SWS+3}], s57 offen
    """)
```

```python
from asmlib import *
from layout import *

def gen_k23(a):
    SWS, SWO, SOUT = 8, 12, 16
    DEPTH = int(os.environ.get('DEPTH', '8')); FORCE = os.environ.get('FORCE', '')
    mf = "v_mfma_f32_32x32x16_bf16"
    O, NEG, S0, S1 = 0, 16, 32, 48
    S = (S0, S1); P = (64, 72); KF = (80, 88); VF = (96, 104)
    QF_, LL, SEL, IDX, L, L16, KA, NA, T0 = 112, 120, 124, 128, 129, 130, 131, 132, 133
    Z, TA, TB, TC, TS, RE, IM = 140, 156, 180, 196, 212, 32, 48
    JT = 228
    A0, A1, Y, G, F = 0, 16, 64, 140, 224
    WO, WA0, YA, OA, GA, PSEL, L16B, WA, WB, M, XA = 246, 247, 248, 249, 250, 251, 252, 253, 254, 255, 139
    WF = lambda b, t: (208, 216, 228, 236)[b] + 4 * t
    OFR = lambda ks: (32 + 4 * ks) if ks < 8 else (80 + 4 * (ks - 8)) if ks < 16 else (144 + 4 * (ks - 16))
    def jobaddr():
        a(f"""
        s_and_b32 s41, s48, 7
        s_lshl_b32 s41, s41, 1
        s_bfe_u32 s42, s48, 0x10003
        s_add_u32 s41, s41, s42           ; tb
        s_lshr_b32 s42, s48, 4            ; cb
        s_and_b32 s43, s3, 3
        s_lshr_b32 s44, s3, 2             ; kh
        s_lshl_b32 s41, s41, 2
        s_add_u32 s41, s41, s43
        s_lshl_b32 s40, s3, 16
        s_lshl_b32 s43, s42, 7
        s_add_u32 s40, s40, s43
        s_and_b32 s36, s48, {os.environ.get("WROT", "3")}
        s_lshl_b32 s43, s36, 19
        s_add_u32 s40, s40, s43
        s_lshl_b32 s36, s36, 1
        s_lshl_b32 s60, s41, 16
        s_lshl_b32 s61, s44, 15
        s_add_u32 s60, s60, s61
        s_add_u32 s60, s60, {OF}
        """)
        for g in range(4):
            a(f"""
            s_add_u32 s43, s42, {g}
            s_and_b32 s43, s43, 3
            s_lshl_b32 s61, s43, 13
            s_add_u32 s{54+g}, s60, s61
            s_lshl_b32 s61, s44, 2
            s_add_u32 s43, s43, s61
            s_sub_u32 s43, s43, s36
            s_and_b32 s43, s43, 7
            s_cmp_ge_u32 s43, 4
            s_cselect_b32 s61, -4, 6
            s_add_u32 s43, s43, s61
            s_lshl_b32 s{50+g}, s43, 14
            """)
        a(f"""
        v_lshrrev_b32 v{T0}, 3, v{L}
        v_and_b32 v{T0+1}, 7, v{L}
        v_bfe_u32 v{T0+2}, v{L}, 4, 1
        v_lshlrev_b32 v{T0+2}, 2, v{T0+2}
        v_xor_b32 v{T0+1}, v{T0+1}, v{T0+2}
        v_lshlrev_b32 v{T0+1}, 4, v{T0+1}
        v_lshl_or_b32 v{WO}, v{T0}, 11, v{T0+1}
        v_lshrrev_b32 v{T0}, 5, v{L}              ; h
        v_bfe_u32 v{T0+1}, v{L}, 2, 2             ; rr
        v_lshl_or_b32 v{T0+1}, v{T0}, 2, v{T0+1}
        v_lshlrev_b32 v{WA0}, 7, v{T0+1}
        v_bfe_u32 v{T0+1}, v{L}, 3, 1
        v_xor_b32 v{T0+1}, s44, v{T0+1}
        v_lshl_or_b32 v{WA0}, v{T0+1}, 6, v{WA0}
        v_and_b32 v{T0+1}, 1, v{L}
        v_lshl_or_b32 v{WA0}, v{T0+1}, 5, v{WA0}
        v_mul_u32_u24 v{PSEL}, 0x202, v{T0+1}
        v_lshlrev_b32 v{PSEL}, 16, v{PSEL}
        v_add_u32 v{PSEL}, 0x01000c0c, v{PSEL}
        v_bfe_u32 v{T0+1}, v{L}, 4, 1
        v_lshl_or_b32 v{WA0}, v{T0+1}, 4, v{WA0}
        v_bfe_u32 v{T0+1}, v{L}, 1, 1
        v_lshl_or_b32 v{WA0}, v{T0+1}, 3, v{WA0}
        v_add_u32 v{L16B}, 4096, v{L16}
        s_lshl_b32 s61, s3, 12
        s_add_u32 s61, s61, 0x10000
        v_add_u32 v{XA}, s61, v{L16}
        v_and_b32 v{T0+1}, 31, v{L}
        s_lshl_b32 s61, s41, 5
        v_add_u32 v{T0+1}, s61, v{T0+1}           ; t
        s_lshl_b32 s60, s42, 6
        s_lshl_b32 s61, s44, 5
        s_add_u32 s60, s60, s61
        v_lshlrev_b32 v{T0+2}, 4, v{T0}
        v_add_u32 v{T0+2}, s60, v{T0+2}           ; c (r=0)
        v_lshlrev_b32 v{OA}, 11, v{T0+1}
        v_lshl_or_b32 v{OA}, v{T0+2}, 1, v{OA}
        v_lshlrev_b32 v{GA}, 3, v{T0+1}
        v_sub_u32 v{T0+3}, 2048, v{T0+1}
        v_sub_u32 v{T0+4}, 1024, v{T0+2}
        s_cmp_lt_u32 s42, 8
        s_cselect_b64 vcc, 0, -1
        s_movk_i32 s58, {-YP}
        s_cselect_b32 s58, {YP}, s58
        v_cndmask_b32 v{T0+1}, v{T0+1}, v{T0+3}, vcc
        v_cndmask_b32 v{T0+2}, v{T0+2}, v{T0+4}, vcc
        v_mul_u32_u24 v{YA}, {YP}, v{T0+2}
        v_and_b32 v{T0+1}, -2, v{T0+1}
        v_lshl_add_u32 v{YA}, v{T0+1}, 1, v{YA}
        """)
    def wodma(sreg):
        for i in range(4):
            a(f"buffer_load_dwordx4 v{WO}, s[{SWO}:{SWO+3}], s{sreg} offen offset:{1024*i} lds")
            a(f"s_add_u32 s{sreg}, s{sreg}, {15360 if i < 3 else 524288 - 3*15360}")
    def yload():
        a(f"s_mov_b32 s59, {GG}")
        a(f"buffer_load_dwordx2 {v(G,2)}, v{GA}, s[{SWS}:{SWS+3}], s59 offen")
        a(f"s_mov_b32 s59, {YT}")
        for r in range(16):
            a(f"buffer_load_dword v{Y+r}, v{YA}, s[{SWS}:{SWS+3}], s59 offen sc1")
            if r < 15: a("s_add_u32 s59, s59, s58")
    def yproc(k):
        if k == 0: a(f"v_mov_b32 v{G+2}, v{G+1}\nv_mov_b32 v{G+3}, v{G+1}\nv_mov_b32 v{G+1}, v{G}"); return
        r = 2 * (k - 1)
        a(f"v_perm_b32 v{Y+r}, v{Y+r}, v{Y+r}, v{PSEL}")
        a(f"v_perm_b32 v{Y+r+1}, v{Y+r+1}, v{Y+r+1}, v{PSEL}")
        a(f"v_pk_mul_f32 {v(Y+r,2)}, {v(Y+r,2)}, {v(G,2)}")
    fload = f"buffer_load_dwordx4 {v(F,4)}, v{L16}, s[{SWS}:{SWS+3}], s49 offen sc1"
    cload = f"buffer_load_dword v{F}, v{L16}, s[{SWS}:{SWS+3}], s49 offen offset:1024 sc1"
    cchk = f"v_readfirstlane_b32 s60, v{F}\ns_cmp_lt_u32 s60, 256"
    fmin = f"v_min3_u32 v{T0}, v{F}, v{F+1}, v{F+2}\nv_min_u32 v{T0}, v{T0}, v{F+3}"
    CN = 244
    def fstore(val):
        a(f"""
        s_lshl_b32 s60, s2, 2
        s_add_u32 s60, s60, {FLG}
        v_mov_b32 v{T0+5}, {val}
        s_mov_b64 exec, 1
        buffer_store_dword v{T0+5}, v{L16}, s[{SWS}:{SWS+3}], s60 offen sc1
        s_mov_b64 exec, -1
        """)
    a(f"""
    s_cmp_ge_u32 s2, 256
    s_cbranch_scc1 K2_END
    s_load_dwordx2 s[{SWS}:{SWS+1}], s[0:1], {WS}
    s_load_dwordx2 s[{SWO}:{SWO+1}], s[0:1], {B_WO}
    s_load_dwordx2 s[{SOUT}:{SOUT+1}], s[0:1], {OUT}
    v_lshrrev_b32 v1, 6, v0
    v_and_b32 v{L}, 63, v0
    s_mov_b32 s{SWS+2}, {WS_USED}
    v_readfirstlane_b32 s3, v1
    s_mov_b32 s{SWS+3}, 0x20000
    s_mov_b32 s{SWO+2}, 0x200000
    s_mov_b32 s{SWO+3}, 0x20000
    s_mov_b32 s{SOUT+2}, 0x400000
    s_mov_b32 s{SOUT+3}, 0x20000
    v_lshlrev_b32 v{L16}, 4, v{L}
    """)
    stamp(a, 0, True); stamp(a, 1)
    a(f"""
    s_and_b32 s4, s2, 7
    s_lshl_b32 s4, s4, 2
    s_bfe_u32 s5, s2, 0x20003
    s_add_u32 s4, s4, s5
    s_lshr_b32 s5, s2, 5
    s_lshl_b32 s5, s5, 3
    s_add_u32 s5, s5, s3
    s_lshl_b32 s20, s4, 18
    s_add_u32 s20, s20, {KV}
    s_lshl_b32 s21, s3, 12
    s_add_u32 s22, s20, s21
    s_lshl_b32 s23, s4, 6
    s_add_u32 s23, s23, s5
    s_lshl_b32 s23, s23, 11           ; Q offset
    s_lshl_b32 s24, s5, 16
    s_lshl_b32 s25, s4, 11
    s_add_u32 s24, s24, s25
    s_add_u32 s24, s24, {OF}          ; O offset
    s_lshr_b32 s26, s3, 1
    s_lshl_b32 s25, s2, 1
    s_add_u32 s26, s26, s25
    s_cmp_lt_u32 s3, 4
    s_cselect_b32 s27, 1, 0
    s_cmp_eq_u32 s26, 510
    s_cselect_b32 s27, 2, s27
    s_cmp_lt_u32 s3, 4
    s_cselect_b32 s27, s27, 0
    s_mov_b32 m0, s21
    s_waitcnt lgkmcnt(0)
    """)
    def dma():
        r = [f"buffer_load_dwordx4 v{L16}, s[{SWS}:{SWS+3}], s22 offen offset:{1024*i} lds" for i in range(4)]
        return r
    adv = ["s_add_u32 s21, s21, 0x8000", "s_add_u32 s22, s22, 0x8000", "s_mov_b32 m0, s21"]
    SD, DV = 88, 245
    site = lambda k: f"buffer_load_dwordx4 v{DV}, s[{SD}:{SD+3}], s22 offen offset:{1024*k} lds\ns_add_u32 s22, s22, s35"
    Z2, R2, ACB, PK = 96, 72, 80, 64
    for t in dma(): a(t)
    a(f"buffer_load_dwordx4 {v(QF_,4)}, v{L16}, s[{SWS}:{SWS+3}], s23 offen")
    a(f"buffer_load_dwordx4 {v(QF_+4,4)}, v{L16}, s[{SWS}:{SWS+3}], s23 offen offset:1024")
    for t in adv: a(t)
    a("s_cmp_eq_u32 s27, 0\ns_cbranch_scc1 K2_NOJOB1")
    n_, h_, pi, t1, x0, x1 = [JT + i for i in range(6)]
    a(f"""
    v_and_b32 v{n_}, 31, v{L}
    v_lshrrev_b32 v{h_}, 5, v{L}
    v_and_b32 v{pi}, 3, v{L}
    v_bfe_u32 v{x0}, v{L}, 3, 2
    v_lshl_or_b32 v{pi}, v{x0}, 2, v{pi}
    v_bfe_u32 v{x0}, v{L}, 2, 1
    v_lshl_or_b32 v{pi}, v{x0}, 4, v{pi}        ; pi(n)
    s_and_b32 s28, s3, 1
    s_lshl_b32 s29, s28, 5
    v_or_b32 v{t1}, s29, v{pi}                  ; t1
    v_lshlrev_b32 v{x0}, 4, v{pi}
    v_lshl_or_b32 v{x0}, v{h_}, 9, v{x0}
    s_mul_i32 s30, s26, {ZP}
    s_add_u32 s31, s30, {ZT}
    """)
    for ks in range(4):
        a(f"buffer_load_dwordx4 {v(Z+4*ks,4)}, v{x0}, s[{SWS}:{SWS+3}], s31 offen offset:{1024*ks}")
    y0, y1, y2 = JT + 6, JT + 7, JT + 8
    a(f"""
    v_mov_b32 v{RE}, 0
    v_and_b32 v{y2}, 1, v{L}
    v_lshlrev_b32 v{y2}, 11, v{y2}
    v_lshl_or_b32 v{y2}, v{h_}, 30, v{y2}
    s_lshl_b32 s31, s26, 1
    s_add_u32 s31, s31, {RR}
    buffer_load_short_d16_hi v{RE}, v{y2}, s[{SWS}:{SWS+3}], s31 offen
    s_cmp_eq_u32 s27, 1
    s_cbranch_scc1 K2_NOJOB1
    v_mov_b32 v{R2}, 0
    s_mov_b32 s31, {RR + 1024}
    buffer_load_short_d16_hi v{R2}, v{y2}, s[{SWS}:{SWS+3}], s31 offen
    s_mov_b32 s31, {ZT + 512 * ZP}
    """)
    for ks in range(4):
        a(f"buffer_load_dwordx4 {v(Z2+4*ks,4)}, v{x0}, s[{SWS}:{SWS+3}], s31 offen offset:{1024*ks}")
    a.label("K2_NOJOB1")
    def stage():
        for t in dma() + adv: a(t)
    a(f"""
    v_mov_b32 v{KA}, v{L16}
    v_add_u32 v{NA}, 0x8000, v{L16}
    v_and_b32 v{T0}, 4, v{L}
    v_cmp_eq_u32 vcc, 0, v{T0}
    v_mov_b32 v{T0}, 0x3f803f80
    v_mov_b32 v{IDX}, 0xdddddddd
    v_cndmask_b32 v{SEL}, 0, v{T0}, vcc
    v_xor_b32 v{SEL+2}, v{SEL}, v{T0}
    v_mov_b32 v{SEL+1}, v{SEL}
    v_mov_b32 v{SEL+3}, v{SEL+2}
    """)
    z2 = lambda r: f"v_pk_mov_b32 {v(r,2)}, 0, 0"
    for r in list(range(O, O + 16, 2)) + [LL, LL + 2]:
        a(f"v_mov_b64 {v(r,2)}, 0")
    a("s_mov_b32 s48, s2")
    jobaddr()
    a(f"""
    s_mov_b32 s49, {FLG}
    s_mov_b32 s46, 0
    s_mov_b64 s[{SD}:{SD+1}], s[{SWS}:{SWS+1}]
    s_mov_b64 s[{SD+2}:{SD+3}], s[{SWS+2}:{SWS+3}]
    s_mov_b32 s35, 0
    s_mov_b32 s38, 0x8000
    s_mov_b32 s39, -1
    s_mov_b32 s32, 0x8000
    """)
    a("s_cmp_eq_u32 s27, 0\ns_cbranch_scc1 K2_NOJOB2")
    hf, tf, x5 = JT + 10, JT + 11, JT + 12
    W = JT + 14
    a(f"""
    v_cvt_f32_u32 v{tf}, v{t1}
    v_cvt_f32_u32 v{hf}, v{h_}
    v_mul_f32 v{x0}, {f2u(1/64)}, v{tf}
    v_mul_f32 v{x1}, 4.0, v{hf}
    v_mul_f32 v{x1}, v{x0}, v{x1}
    v_mul_f32 v{x5}, {f2u(5.0)}, v{x0}
    """)
    for k in range(16):
        o = k & 1
        a(f"v_cos_f32 v{W+o}, v{x1}")
        a(f"v_sin_f32 v{W+2+o}, v{x1}")
        if k < 15: a(f"v_add_f32 v{x1}, v{x1}, v{x5 if k % 4 == 3 else x0}")
        if o:
            d = TA + 6 * (k // 4) + (k % 4) // 2
            a(f"v_cvt_pk_bf16_f32 v{d+2}, v{W}, v{W+1}")
            a(f"v_cvt_pk_bf16_f32 v{d+4}, v{W+2}, v{W+3}")
            a(f"v_xor_b32 v{d}, 0x80008000, v{d+4}")
    stage()
    a(f"""
    v_mul_f32 v{hf}, {f2u(16.0)}, v{hf}
    v_mul_f32 v{x0}, {f2u(1/2048)}, v{tf}
    v_mul_f32 v{x1}, v{x0}, v{hf}
    v_mov_b32 v{RE+1}, 0
    """)
    for r in range(RE + 2, RE + 16, 2): a(f"v_mov_b64 {v(r,2)}, 0")
    for k in range(16):
        a(f"v_cos_f32 v{TC+k}, v{x1}")
        a(f"v_sin_f32 v{TS+k}, v{x1}")
        if k < 15: a(f"v_add_f32 v{x1}, v{x1}, v{x0}")
    stage()
    a(f"""
    v_cvt_f32_u32 v{x0}, v{n_}
    v_mul_f32 v{x0}, {f2u(1/32)}, v{x0}
    v_mul_f32 v{x1}, v{x0}, v{hf}
    """)
    for k in range(16):
        o = k & 1
        a(f"v_cos_f32 v{W+o}, v{x1}")
        a(f"v_sin_f32 v{W+2+o}, v{x1}")
        if k < 15: a(f"v_add_f32 v{x1}, v{x1}, v{x0}")
        if o:
            a(f"v_cvt_pk_bf16_f32 v{TB+k//2}, v{W}, v{W+1}")
            a(f"v_cvt_pk_bf16_f32 v{TB+8+k//2}, v{W+2}, v{W+3}")
    a(f"""
    v_lshlrev_b32 v{y0}, 7, v{n_}
    v_lshl_or_b32 v{y0}, v{h_}, 5, v{y0}
    s_lshl_b32 s28, s28, 6
    s_add_u32 s30, s30, s28
    s_add_u32 s30, s30, {YT}
    {dma()[0]}
    s_waitcnt vmcnt({2+5+9})
    """)
    stamp(a, 2)
    a("s_barrier")
    stamp(a, 3)
    a("s_waitcnt vmcnt(9)")
    a.label("K2_JOBC")
    for ks in range(4):
        a(f"{mf} {v(RE,16)}, {v(Z+4*ks,4)}, {v(TA+6*ks+2,4)}, {v(RE,16)}")
        a(f"{mf} {v(IM,16)}, {v(Z+4*ks,4)}, {v(TA+6*ks,4)}, {'0' if ks == 0 else v(IM,16)}")
    PR, PI = Z, Z + 8
    for k in range(0, 16, 2):
        t = JT + 10 + 4 * ((k // 2) % 2)
        a(f"v_pk_mul_f32 {v(t,2)}, {v(RE+k,2)}, {v(TC+k,2)}")
        a(f"v_pk_mul_f32 {v(t+2,2)}, {v(IM+k,2)}, {v(TC+k,2)}")
        a(f"v_pk_fma_f32 {v(t,2)}, {v(IM+k,2)}, {v(TS+k,2)}, {v(t,2)}")
        a(f"v_pk_fma_f32 {v(t+2,2)}, {v(RE+k,2)}, {v(TS+k,2)}, {v(t+2,2)} neg_lo:[1,0,0] neg_hi:[1,0,0]")
        a(f"v_cvt_pk_bf16_f32 v{PR+k//2}, v{t}, v{t+1}")
        a(f"v_cvt_pk_bf16_f32 v{PI+k//2}, v{t+2}, v{t+3}")
        if k == 6:
            a(f"{mf} {v(ACB,16)}, {v(PR,4)}, {v(TB,4)}, 0")
            a(f"{mf} {v(ACB,16)}, {v(PI,4)}, {v(TB+8,4)}, {v(ACB,16)}")
    a(f"{mf} {v(ACB,16)}, {v(PR+4,4)}, {v(TB+4,4)}, {v(ACB,16)}")
    a(f"{mf} {v(ACB,16)}, {v(PI+4,4)}, {v(TB+12,4)}, {v(ACB,16)}")
    for k in range(8): a(f"v_cvt_pk_bf16_f32 v{PK+k}, v{ACB+2*k}, v{ACB+2*k+1}")
    a(f"""
    buffer_store_dwordx4 {v(PK,4)}, v{y0}, s[{SWS}:{SWS+3}], s30 offen sc1
    buffer_store_dwordx4 {v(PK+4,4)}, v{y0}, s[{SWS}:{SWS+3}], s30 offen offset:16 sc1
    s_add_u32 s30, s30, 4096
    s_cmp_lg_u32 s28, 0
    s_cbranch_scc1 K2_NOWRAP
    s_mov_b64 exec, 1
    buffer_store_dword v{PK}, v{y0}, s[{SWS}:{SWS+3}], s30 offen sc1
    s_mov_b64 exec, -1
    K2_NOWRAP:
    s_cmp_eq_u32 s27, 1
    s_cbranch_scc1 K2_START
    s_mov_b32 s27, 1
    s_add_u32 s30, s28, {YT + 512 * YP}
    v_mov_b32 v{RE}, v{R2}
    v_mov_b32 v{RE+1}, 0
    """)
    for r in range(2, 16, 2): a(f"v_mov_b64 {v(RE+r,2)}, 0")
    for r in range(0, 16, 2): a(f"v_mov_b64 {v(Z+r,2)}, {v(Z2+r,2)}")
    a("s_nop 1\ns_branch K2_JOBC")
    a.label("K2_NOJOB2")
    stage(); stage(); a(dma()[0])
    a("s_waitcnt vmcnt(9)")
    stamp(a, 2)
    a("s_barrier")
    stamp(a, 3)
    a.label("K2_START")
    rdK = lambda b, base, tile: [f"ds_read_b128 {v(KF[b]+4*j,4)}, v{base} offset:{tile*4096+j*1024}" for j in range(2)]
    rdV = lambda b, base, tile: [f"ds_read_b128 {v(VF[b]+4*j,4)}, v{base} offset:{tile*4096+2048+j*1024}" for j in range(2)]
    def qk(b, j, c): return f"{mf} {v(S[b],16)}, {v(KF[b]+4*j,4)}, {v(QF_+4*j,4)}, {c if j == 0 else v(S[b],16)}"
    def pv(b, j): return f"v_smfmac_f32_32x32x32_bf16 {v(O,16)}, {v(VF[b]+4*j,4)}, {v(S[b]+8*j,8)}, v{IDX}"
    def lsum(b, j): return f"v_smfmac_f32_16x16x64_bf16 {v(LL,4)}, {v(SEL,4)}, {v(S[b]+8*j,8)}, v{IDX}"
    def rowmax(src, acc, first):
        r = []
        if first: r.append(f"v_max_f32 v{acc}, v{src}, v{src+1}")
        for k in range(2 if first else 0, 16, 2): r.append(f"v_max3_f32 v{acc}, v{src+k}, v{src+k+1}, v{acc}")
        return r
    def setneg(acc):
        r = [f"v_mov_b32 v{acc+1}, v{acc}", f"v_permlane32_swap_b32 v{acc}, v{acc+1}", f"v_max_f32 v{acc}, v{acc}, v{acc+1}",
             f"v_sub_f32 v{NEG}, 0, v{acc}", f"v_sub_f32 v{NEG+1}, 0, v{acc}"]
        for k in range(2, 16, 2): r.append(f"v_mov_b64 {v(NEG+k,2)}, {v(NEG,2)}")
        return r
    for t in rdK(0, KA, 0) + rdK(1, KA, 1) + rdV(0, KA, 0): a(t)
    for r in list(range(S1 + 8, S1 + 16, 2)) + [VF[1] + 4, VF[1] + 6]: a(f"v_mov_b64 {v(r,2)}, 0")
    a(f"v_mov_b32 v{DV}, v{L16}")
    if os.environ.get("WPF", "0") == "1":
        a(f"""
        s_and_b32 s37, s2, 0xf8
        s_add_u32 s37, s37, s3
        s_lshl_b32 s37, s37, 13
        v_lshlrev_b32 v{WA}, 3, v{L16}
        buffer_load_dword v{WB}, v{WA}, s[{SWO}:{SWO+3}], s37 offen
        """)
    a("s_waitcnt lgkmcnt(4)")
    a(qk(0, 0, "0")); a(qk(0, 1, None))
    for t in rowmax(S0, T0, True) + setneg(T0): a(t)
    a(qk(0, 0, v(NEG, 16))); a(qk(0, 1, None))
    a("s_mov_b32 s33, 0\ns_nop 7")
    stamp(a, 4)
    a(".p2align 6")
    a.label("K2_LOOP")
    ex = lambda b, k: f"v_exp_f32 v{S[b]+k}, v{S[b]+k}"
    cv = lambda b, k: f"v_cvt_pk_bf16_f32 v{P[b]+k}, v{S[b]+2*k}, v{S[b]+2*k+1}"
    for i in range(8):
        b = i & 1
        rk = rdK(b, KA, i + 2) if i < 6 else rdK(b, NA, i - 6)
        rv = rdV(b ^ 1, KA, i + 1) if i < 7 else rdV(b ^ 1, NA, 0)
        a(ex(b, 0))
        a("s_waitcnt lgkmcnt(0)")
        a(pv(b ^ 1, 1))
        if i == 6:
            a("s_waitcnt vmcnt(8)\ns_barrier")
        a(rk[0]); a(ex(b, 1)); a(rk[1]); a(ex(b, 2)); a(rv[0]); a(ex(b, 3))
        a(lsum(b ^ 1, 1))
        a(rv[1])
        a(ex(b, 4))
        a(qk(b ^ 1, 0, v(NEG, 16)))
        a(ex(b, 5)); a(ex(b, 6)); a(ex(b, 7))
        a(qk(b ^ 1, 1, None))
        if i == 6:
            a(f"""
            s_add_u32 s21, s21, 0x8000
            s_sub_u32 s60, s21, 0x28000
            s_cselect_b32 s21, s21, s60
            s_mov_b32 m0, s21
            s_add_u32 s22, s22, s38
            s_and_b32 s22, s22, s39
            s_cmp_eq_u32 s33, 4
            s_cbranch_scc1 K2_SWITCH
            K2_SWRET:
            """)
        if i % 2 == 0: a(site((i // 2 + 1) & 3))
        a(ex(b, 8)); a(ex(b, 9)); a(ex(b, 10))
        a(pv(b, 0))
        a(ex(b, 11)); a(ex(b, 12)); a(ex(b, 13))
        a(lsum(b, 0))
        if i == 7:
            a(f"v_mov_b32 v{KA}, v{NA}")
            a("s_add_u32 s32, s32, 0x8000\ns_cmp_eq_u32 s32, 0x28000\ns_cselect_b32 s32, 0, s32")
            a("s_add_u32 s33, s33, 1\ns_cmp_lt_u32 s33, 8")
        a(ex(b, 14))
        if i == 7: a(f"v_add_u32 v{NA}, s32, v{L16}")
        a(ex(b, 15))
    a("s_cbranch_scc1 K2_LOOP")
    a(pv(1, 1)); a(lsum(1, 1))
    stamp(a, 5)
    a("s_mov_b64 exec, 1"); a(cload); a("s_mov_b64 exec, -1")
    a(f"v_mov_b64 {v(T0+1,2)}, 0" if (T0 + 1) % 2 == 0 else "")
    a(f"s_mov_b32 s34, {f2u(2.0**96)}")
    a(f"v_mov_b32 v{T0}, v{LL}")
    for k in range(0, 16, 2): a(f"v_pk_fma_f32 {v(T0+1,2)}, {v(O+k,2)}, 0, {v(T0+1,2)}")
    a(f"""
    v_add_f32 v{T0+1}, v{T0+1}, v{T0+2}
    v_add_f32 v{T0+1}, v{T0+1}, v{T0}
    v_cmp_ngt_f32 vcc, s34, v{T0+1}
    s_cbranch_vccnz K2_SLOW
    """)
    a.label("K2_EPI")
    a(f"v_rcp_f32 v{T0+1}, v{T0}")
    a(f"v_mov_b32 v{T0+2}, v{T0+1}")
    for k in range(0, 16, 2):
        a(f"v_pk_mul_f32 {v(O+k,2)}, {v(O+k,2)}, {v(T0+1,2)}")
        a(f"v_cvt_pk_bf16_f32 v{S0+k//2}, v{O+k}, v{O+k+1}")
        if k == 6: a(f"buffer_store_dwordx4 {v(S0,4)}, v{L16}, s[{SWS}:{SWS+3}], s24 offen sc1")
    a(f"buffer_store_dwordx4 {v(S0+4,4)}, v{L16}, s[{SWS}:{SWS+3}], s24 offen offset:1024 sc1")
    a("s_waitcnt vmcnt(0)")
    stamp(a, 6)
    a("s_barrier")
    a(cchk)
    a("s_cselect_b32 s46, 0, 1")
    a("s_cmp_lg_u32 s3, 0\ns_cbranch_scc1 K2_YL")
    a(f"""
    v_readfirstlane_b32 s60, v{CN}
    s_and_b32 s61, s2, 7
    s_lshl_b32 s61, s61, 3
    s_bfm_b64 s[42:43], 8, s61
    s_cmp_eq_u32 s60, 255
    s_cselect_b64 s[42:43], -1, s[42:43]
    s_cselect_b32 s44, 2, 0
    s_cselect_b32 s46, 1, s46
    """)
    if FORCE: a(f"s_cbranch_scc1 K2_PUB\ns_and_b32 s60, s2, {FORCE}\ns_cmp_eq_u32 s60, 0\ns_cbranch_scc1 K2_ABANDON")
    a("s_cmp_eq_u32 s46, 0\ns_cbranch_scc1 K2_ABANDON")
    a.label("K2_PUB")
    fstore(2)
    a.label("K2_YL")
    for k in range(1, 4): a(site(k))
    a("s_cmp_eq_u32 s46, 0\ns_cbranch_scc1 K2_NOY")
    yload()
    a("s_cmp_lg_u32 s3, 0\ns_cbranch_scc1 K2_JOB")
    a("s_mov_b64 exec, s[42:43]")
    if os.environ.get("POLLMAX"): a("s_mov_b32 s63, 20000")
    a.label("K2_POLL")
    if os.environ.get("POLLMAX"): a(f"s_sub_u32 s63, s63, 1\ns_cbranch_scc1 K2_PEND")
    if os.environ.get("SLEEP"): a(f"s_sleep {os.environ['SLEEP']}")
    a(fload); a("s_waitcnt vmcnt(0)"); a(fmin)
    a(f"v_cmp_eq_u32 vcc, 0, v{T0}\ns_cbranch_vccnz K2_POLL")
    a.label("K2_PEND")
    a(f"v_max3_u32 v{T0}, v{F}, v{F+1}, v{F+2}\nv_max_u32 v{T0}, v{T0}, v{F+3}")
    a(f"v_cmp_lt_u32 vcc, 2, v{T0}\ns_mov_b64 exec, -1\ns_cmp_eq_u64 vcc, 0\ns_cselect_b32 s44, 0, s44\nv_mov_b32 v{M}, s44")
    a.label("K2_MODE")
    a(f"""
    v_lshlrev_b32 v{T0}, 12, v{L}
    v_add_u32 v{T0}, 0x10000, v{T0}
    s_mov_b64 exec, 0xff
    ds_write_b32 v{T0}, v{M}
    s_mov_b64 exec, -1
    s_waitcnt lgkmcnt(0)
    """)
    a.label("K2_JOB")
    def reads(ks):
        r = []
        if ks % 8 == 0: r += [f"v_add_u32 v{WA}, s{50+ks//8}, v{WA0}", f"v_xor_b32 v{WB}, 64, v{WA}"]
        return r + [f"ds_read_b64_tr_b16 {v(WF(ks&3,t)+2*sec,2)}, v{WA+t} offset:{(ks%8)*2048+sec*1024}" for t in range(2) for sec in range(2)]
    oload = lambda ks: f"buffer_load_dwordx4 {v(OFR(ks),4)}, v{L16B if ks & 4 else L16}, s[{SWS}:{SWS+3}], s{54+ks//8} offen offset:{1024*(ks%4)} sc1"
    a("s_waitcnt vmcnt(17)")
    stamp(a, 7)
    a("s_barrier")
    stamp(a, 8)
    for ks in range(DEPTH): a(oload(ks))
    for ks in range(3):
        for t in reads(ks): a(t)
    a(f"ds_read_b32 v{M}, v{XA}\ns_waitcnt lgkmcnt(0)\nv_readfirstlane_b32 s47, v{M}")
    a("s_cmp_eq_u32 s47, 1\ns_cbranch_scc1 K2_QUIT")
    a("s_cmp_eq_u32 s46, 0\ns_cbranch_scc1 K2_YLATE")
    a.label("K2_GEMM")
    for ks in range(32):
        if ks + 3 < 32:
            for t in reads(ks + 3): a(t)
        a(f"s_waitcnt vmcnt({min(32, ks + DEPTH) - ks - 1}) lgkmcnt({4 * min(3, 31 - ks)})")
        c = "0" if ks == 0 else None
        a(f"{mf} {v(A1,16)}, {v(WF(ks&3,1),4)}, {v(OFR(ks),4)}, {c or v(A1,16)}")
        a(f"{mf} {v(A0,16)}, {v(WF(ks&3,0),4)}, {v(OFR(ks),4)}, {c or v(A0,16)}")
        if ks + DEPTH < 32: a(oload(ks + DEPTH))
        if 2 <= ks < 11: yproc(ks - 2)
    stamp(a, 9)
    a(f"v_xor_b32 v{T0+1}, 0x4000, v{XA}")
    for i in range(4): a(f"ds_write_b128 v{XA}, {v(A1+4*i,4)} offset:{1024*i}")
    for r in range(0, 16, 2): a(f"v_pk_fma_f32 {v(Y+r,2)}, {v(A0+r,2)}, {v(G+2,2)}, {v(Y+r,2)}")
    a("s_waitcnt lgkmcnt(0)\ns_barrier")
    for i in range(4): a(f"ds_read_b128 {v(A1+4*i,4)}, v{T0+1} offset:{1024*i}")
    for i in range(4):
        a(f"s_waitcnt lgkmcnt({3-i})")
        for r in range(4 * i, 4 * i + 4, 2):
            a(f"v_pk_fma_f32 {v(Y+r,2)}, {v(A1+r,2)}, {v(G+2,2)}, {v(Y+r,2)}")
            a(f"v_cvt_pk_bf16_f32 v{A0+r//2}, v{Y+r}, v{Y+r+1}")
        if i % 2: a(f"buffer_store_dwordx4 {v(A0+2*(i-1),4)}, v{OA}, s[{SOUT}:{SOUT+3}], 0 offen offset:{8*(i-1)}")
    a("s_cmp_eq_u32 s47, 2\ns_cbranch_scc1 K2_HELP")
    a.label("K2_FIN")
    if STAMPS: a("s_waitcnt vmcnt(0)")
    stamp(a, 10); stamp(a, 11, True)
    stamp_flush(a, 12, SWS, 1, 3)
    a.label("K2_END")
    a("s_endpgm")
    a.label("K2_SWITCH")
    a(f"""
    s_mov_b64 s[{SD}:{SD+1}], s[{SWO}:{SWO+1}]
    s_mov_b64 s[{SD+2}:{SD+3}], s[{SWO+2}:{SWO+3}]
    s_mov_b32 s22, s40
    s_movk_i32 s35, 15360
    s_mov_b32 s38, {524288 - 4*15360}
    s_mov_b32 s39, 0x1fffff
    v_mov_b32 v{DV}, v{WO}
    s_cmp_lg_u32 s3, 0
    s_cbranch_scc1 K2_SWRET
    v_mov_b32 v{CN}, 1
    s_mov_b64 exec, 1
    buffer_atomic_add v{CN}, v{L16}, s[{SWS}:{SWS+3}], s49 offen offset:1024 sc0 sc1
    s_mov_b64 exec, -1
    s_branch K2_SWRET
    """)
    a.label("K2_NOY")
    a("s_waitcnt vmcnt(0)\ns_branch K2_JOB")
    a.label("K2_ABANDON")
    fstore(3)
    a(f"v_mov_b32 v{M}, 1\ns_branch K2_MODE")
    a.label("K2_QUIT")
    a("s_waitcnt vmcnt(0)\ns_endpgm")
    a.label("K2_YLATE")
    yload()
    a("s_waitcnt vmcnt(0)")
    a("s_branch K2_GEMM")
    a.label("K2_HELP")
    a("s_cmp_eq_u32 s48, s2\ns_cselect_b32 s48, -1, s48")
    a.label("K2_HNEXT")
    a(f"""
    s_add_u32 s48, s48, 1
    s_cmp_ge_u32 s48, 256
    s_cbranch_scc1 K2_FIN
    s_lshl_b32 s60, s48, 2
    s_add_u32 s60, s60, {FLG}
    buffer_load_dword v{F}, v{L16}, s[{SWS}:{SWS+3}], s60 offen sc1
    s_waitcnt vmcnt(0)
    v_readfirstlane_b32 s60, v{F}
    s_cmp_eq_u32 s60, 3
    s_cbranch_scc0 K2_HNEXT
    s_barrier
    """)
    jobaddr()
    a("s_lshl_b32 s59, s3, 12")
    for c in range(4):
        a(f"s_add_u32 m0, s59, {(0x18000, 0x20000, 0, 0x8000)[c]}\ns_nop 0")
        wodma(40)
        a("s_and_b32 s40, s40, 0x1fffff")
    a(f"""
    s_mov_b32 s46, 0
    v_mov_b32 v{M}, 2
    ds_write_b32 v{XA}, v{M}
    s_waitcnt vmcnt(0) lgkmcnt(0)
    s_barrier
    s_branch K2_JOB
    """)
    a.label("K2_SLOW")
    gl = lambda r, off: f"buffer_load_dwordx4 {v(r,4)}, v{L16}, s[{SWS}:{SWS+3}], s45 offen offset:{off}"
    a(f"""
    s_waitcnt lgkmcnt(0)
    v_mov_b32 v{T0}, 0xff800000
    s_mov_b32 s45, s20
    s_mov_b32 s33, 0
    """)
    a.label("K2_SL1")
    a(gl(KF[0], 0)); a(gl(KF[0] + 4, 1024))
    a("s_add_u32 s45, s45, 4096\ns_waitcnt vmcnt(0)")
    a(qk(0, 0, "0")); a(qk(0, 1, None))
    for t in rowmax(S0, T0, False): a(t)
    a("s_add_u32 s33, s33, 1\ns_cmp_lt_u32 s33, 64\ns_cbranch_scc1 K2_SL1")
    for t in setneg(T0): a(t)
    for r in list(range(O, O + 16, 2)) + [LL, LL + 2]: a(f"v_mov_b64 {v(r,2)}, 0")
    a("s_mov_b32 s45, s20\ns_mov_b32 s33, 0")
    a.label("K2_SL2")
    a(gl(KF[0], 0)); a(gl(KF[0] + 4, 1024)); a(gl(VF[0], 2048)); a(gl(VF[0] + 4, 3072))
    a("s_add_u32 s45, s45, 4096\ns_waitcnt vmcnt(0)")
    a(qk(0, 0, v(NEG, 16))); a(qk(0, 1, None))
    for k in range(16): a(ex(0, k))
    a(pv(0, 0)); a(pv(0, 1)); a(lsum(0, 0)); a(lsum(0, 1))
    a("s_add_u32 s33, s33, 1\ns_cmp_lt_u32 s33, 64\ns_cbranch_scc1 K2_SL2")
    a(f"s_nop 7\ns_nop 7\nv_mov_b32 v{T0}, v{LL}")
    a("s_branch K2_EPI")
```

```python
from asmlib import *
from layout import *

def gen_k23(a):
    SWS, SWO, SOUT = 8, 12, 16
    DEPTH = int(os.environ.get('DEPTH', '8')); FORCE = os.environ.get('FORCE', '')
    mf = "v_mfma_f32_32x32x16_bf16"
    O, NEG, S0, S1 = 0, 16, 32, 48
    S = (S0, S1); P = (64, 72); KF = (80, 88); VF = (96, 104)
    QF_, LL, SEL, IDX, L, L16, KA, NA, T0 = 112, 120, 124, 128, 129, 130, 131, 132, 133
    Z, TA, TB, TC, TS, RE, IM = 140, 156, 180, 196, 212, 32, 48
    JT = 228
    A0, A1, Y, G, F = 0, 16, 64, 140, 224
    WO, WA0, YA, OA, GA, PSEL, L16B, WA, WB, M, XA = 246, 247, 248, 249, 250, 251, 252, 253, 254, 255, 139
    WF = lambda b, t: (208, 216, 228, 236)[b] + 4 * t
    OFR = lambda ks: (32 + 4 * ks) if ks < 8 else (80 + 4 * (ks - 8)) if ks < 16 else (144 + 4 * (ks - 16))
    def jobaddr():
        a(f"""
        s_and_b32 s41, s48, 7
        s_lshl_b32 s41, s41, 1
        s_bfe_u32 s42, s48, 0x10003
        s_add_u32 s41, s41, s42           ; tb
        s_lshr_b32 s42, s48, 4            ; cb
        s_and_b32 s43, s3, 3
        s_lshr_b32 s44, s3, 2             ; kh
        s_lshl_b32 s41, s41, 2
        s_add_u32 s41, s41, s43
        s_lshl_b32 s40, s3, 16
        s_lshl_b32 s43, s42, 7
        s_add_u32 s40, s40, s43
        s_and_b32 s36, s48, {os.environ.get("WROT", "3")}
        s_lshl_b32 s43, s36, 19
        s_add_u32 s40, s40, s43
        s_lshl_b32 s36, s36, 1
        s_lshl_b32 s60, s41, 16
        s_lshl_b32 s61, s44, 15
        s_add_u32 s60, s60, s61
        s_add_u32 s60, s60, {OF}
        """)
        for g in range(4):
            a(f"""
            s_add_u32 s43, s42, {g}
            s_and_b32 s43, s43, 3
            s_lshl_b32 s61, s43, 13
            s_add_u32 s{54+g}, s60, s61
            s_lshl_b32 s61, s44, 2
            s_add_u32 s43, s43, s61
            s_sub_u32 s43, s43, s36
            s_and_b32 s43, s43, 7
            s_cmp_ge_u32 s43, 4
            s_cselect_b32 s61, -4, 6
            s_add_u32 s43, s43, s61
            s_lshl_b32 s{50+g}, s43, 14
            """)
        a(f"""
        v_lshrrev_b32 v{T0}, 3, v{L}
        v_and_b32 v{T0+1}, 7, v{L}
        v_bfe_u32 v{T0+2}, v{L}, 4, 1
        v_lshlrev_b32 v{T0+2}, 2, v{T0+2}
        v_xor_b32 v{T0+1}, v{T0+1}, v{T0+2}
        v_lshlrev_b32 v{T0+1}, 4, v{T0+1}
        v_lshl_or_b32 v{WO}, v{T0}, 11, v{T0+1}
        v_lshrrev_b32 v{T0}, 5, v{L}              ; h
        v_bfe_u32 v{T0+1}, v{L}, 2, 2             ; rr
        v_lshl_or_b32 v{T0+1}, v{T0}, 2, v{T0+1}
        v_lshlrev_b32 v{WA0}, 7, v{T0+1}
        v_bfe_u32 v{T0+1}, v{L}, 3, 1
        v_xor_b32 v{T0+1}, s44, v{T0+1}
        v_lshl_or_b32 v{WA0}, v{T0+1}, 6, v{WA0}
        v_and_b32 v{T0+1}, 1, v{L}
        v_lshl_or_b32 v{WA0}, v{T0+1}, 5, v{WA0}
        v_mul_u32_u24 v{PSEL}, 0x202, v{T0+1}
        v_lshlrev_b32 v{PSEL}, 16, v{PSEL}
        v_add_u32 v{PSEL}, 0x01000c0c, v{PSEL}
        v_bfe_u32 v{T0+1}, v{L}, 4, 1
        v_lshl_or_b32 v{WA0}, v{T0+1}, 4, v{WA0}
        v_bfe_u32 v{T0+1}, v{L}, 1, 1
        v_lshl_or_b32 v{WA0}, v{T0+1}, 3, v{WA0}
        v_add_u32 v{L16B}, 4096, v{L16}
        s_lshl_b32 s61, s3, 12
        s_add_u32 s61, s61, 0x10000
        v_add_u32 v{XA}, s61, v{L16}
        v_and_b32 v{T0+1}, 31, v{L}
        s_lshl_b32 s61, s41, 5
        v_add_u32 v{T0+1}, s61, v{T0+1}           ; t
        s_lshl_b32 s60, s42, 6
        s_lshl_b32 s61, s44, 5
        s_add_u32 s60, s60, s61
        v_lshlrev_b32 v{T0+2}, 4, v{T0}
        v_add_u32 v{T0+2}, s60, v{T0+2}           ; c (r=0)
        v_lshlrev_b32 v{OA}, 11, v{T0+1}
        v_lshl_or_b32 v{OA}, v{T0+2}, 1, v{OA}
        v_lshlrev_b32 v{GA}, 3, v{T0+1}
        v_sub_u32 v{T0+3}, 2048, v{T0+1}
        v_sub_u32 v{T0+4}, 1024, v{T0+2}
        s_cmp_lt_u32 s42, 8
        s_cselect_b64 vcc, 0, -1
        s_movk_i32 s58, {-YP}
        s_cselect_b32 s58, {YP}, s58
        v_cndmask_b32 v{T0+1}, v{T0+1}, v{T0+3}, vcc
        v_cndmask_b32 v{T0+2}, v{T0+2}, v{T0+4}, vcc
        v_mul_u32_u24 v{YA}, {YP}, v{T0+2}
        v_and_b32 v{T0+1}, -2, v{T0+1}
        v_lshl_add_u32 v{YA}, v{T0+1}, 1, v{YA}
        """)
    def wodma(sreg):
        for i in range(4):
            a(f"buffer_load_dwordx4 v{WO}, s[{SWO}:{SWO+3}], s{sreg} offen offset:{1024*i} lds")
            a(f"s_add_u32 s{sreg}, s{sreg}, {15360 if i < 3 else 524288 - 3*15360}")
    def yload():
        a(f"s_mov_b32 s59, {GG}")
        a(f"buffer_load_dwordx2 {v(G,2)}, v{GA}, s[{SWS}:{SWS+3}], s59 offen")
        a(f"s_mov_b32 s59, {YT}")
        for r in range(16):
            a(f"buffer_load_dword v{Y+r}, v{YA}, s[{SWS}:{SWS+3}], s59 offen sc1")
            if r < 15: a("s_add_u32 s59, s59, s58")
    def yproc(k):
        if k == 0: a(f"v_mov_b32 v{G+2}, v{G+1}\nv_mov_b32 v{G+3}, v{G+1}\nv_mov_b32 v{G+1}, v{G}"); return
        r = 2 * (k - 1)
        a(f"v_perm_b32 v{Y+r}, v{Y+r}, v{Y+r}, v{PSEL}")
        a(f"v_perm_b32 v{Y+r+1}, v{Y+r+1}, v{Y+r+1}, v{PSEL}")
        a(f"v_pk_mul_f32 {v(Y+r,2)}, {v(Y+r,2)}, {v(G,2)}")
    fload = f"buffer_load_dwordx4 {v(F,4)}, v{L16}, s[{SWS}:{SWS+3}], s49 offen sc1"
    cload = f"buffer_load_dword v{F}, v{L16}, s[{SWS}:{SWS+3}], s49 offen offset:1024 sc1"
    cchk = f"v_readfirstlane_b32 s60, v{F}\ns_cmp_lt_u32 s60, 256"
    fmin = f"v_min3_u32 v{T0}, v{F}, v{F+1}, v{F+2}\nv_min_u32 v{T0}, v{T0}, v{F+3}"
    CN = 244
    def fstore(val):
        a(f"""
        s_lshl_b32 s60, s2, 2
        s_add_u32 s60, s60, {FLG}
        v_mov_b32 v{T0+5}, {val}
        s_mov_b64 exec, 1
        buffer_store_dword v{T0+5}, v{L16}, s[{SWS}:{SWS+3}], s60 offen sc1
        s_mov_b64 exec, -1
        """)
    a(f"""
    s_cmp_ge_u32 s2, 256
    s_cbranch_scc1 K2_END
    s_load_dwordx2 s[{SWS}:{SWS+1}], s[0:1], {WS}
    s_load_dwordx2 s[{SWO}:{SWO+1}], s[0:1], {B_WO}
    s_load_dwordx2 s[{SOUT}:{SOUT+1}], s[0:1], {OUT}
    v_lshrrev_b32 v1, 6, v0
    v_and_b32 v{L}, 63, v0
    s_mov_b32 s{SWS+2}, {WS_USED}
    v_readfirstlane_b32 s3, v1
    s_mov_b32 s{SWS+3}, 0x20000
    s_mov_b32 s{SWO+2}, 0x200000
    s_mov_b32 s{SWO+3}, 0x20000
    s_mov_b32 s{SOUT+2}, 0x400000
    s_mov_b32 s{SOUT+3}, 0x20000
    v_lshlrev_b32 v{L16}, 4, v{L}
    """)
    stamp(a, 0, True); stamp(a, 1)
    a(f"""
    s_and_b32 s4, s2, 7
    s_lshl_b32 s4, s4, 2
    s_bfe_u32 s5, s2, 0x20003
    s_add_u32 s4, s4, s5
    s_lshr_b32 s5, s2, 5
    s_lshl_b32 s5, s5, 3
    s_add_u32 s5, s5, s3
    s_lshl_b32 s20, s4, 18
    s_add_u32 s20, s20, {KV}
    s_lshl_b32 s21, s3, 12
    s_add_u32 s22, s20, s21
    s_lshl_b32 s23, s4, 6
    s_add_u32 s23, s23, s5
    s_lshl_b32 s23, s23, 11           ; Q offset
    s_lshl_b32 s24, s5, 16
    s_lshl_b32 s25, s4, 11
    s_add_u32 s24, s24, s25
    s_add_u32 s24, s24, {OF}          ; O offset
    s_lshr_b32 s26, s3, 1
    s_lshl_b32 s25, s2, 1
    s_add_u32 s26, s26, s25
    s_cmp_lt_u32 s3, 4
    s_cselect_b32 s27, 1, 0
    s_cmp_eq_u32 s26, 510
    s_cselect_b32 s27, 2, s27
    s_cmp_lt_u32 s3, 4
    s_cselect_b32 s27, s27, 0
    s_mov_b32 m0, s21
    s_waitcnt lgkmcnt(0)
    """)
    def dma():
        r = [f"buffer_load_dwordx4 v{L16}, s[{SWS}:{SWS+3}], s22 offen offset:{1024*i} lds" for i in range(4)]
        return r
    adv = ["s_add_u32 s21, s21, 0x8000", "s_add_u32 s22, s22, 0x8000", "s_mov_b32 m0, s21"]
    SD, DV = 88, 245
    site = lambda k: f"buffer_load_dwordx4 v{DV}, s[{SD}:{SD+3}], s22 offen offset:{1024*k} lds\ns_add_u32 s22, s22, s35"
    Z2, R2, ACB, PK = 96, 72, 80, 64
    for t in dma(): a(t)
    a(f"buffer_load_dwordx4 {v(QF_,4)}, v{L16}, s[{SWS}:{SWS+3}], s23 offen")
    a(f"buffer_load_dwordx4 {v(QF_+4,4)}, v{L16}, s[{SWS}:{SWS+3}], s23 offen offset:1024")
    for t in adv: a(t)
    a("s_cmp_eq_u32 s27, 0\ns_cbranch_scc1 K2_NOJOB1")
    n_, h_, pi, t1, x0, x1 = [JT + i for i in range(6)]
    a(f"""
    v_and_b32 v{n_}, 31, v{L}
    v_lshrrev_b32 v{h_}, 5, v{L}
    v_and_b32 v{pi}, 3, v{L}
    v_bfe_u32 v{x0}, v{L}, 3, 2
    v_lshl_or_b32 v{pi}, v{x0}, 2, v{pi}
    v_bfe_u32 v{x0}, v{L}, 2, 1
    v_lshl_or_b32 v{pi}, v{x0}, 4, v{pi}        ; pi(n)
    s_and_b32 s28, s3, 1
    s_lshl_b32 s29, s28, 5
    v_or_b32 v{t1}, s29, v{pi}                  ; t1
    v_lshlrev_b32 v{x0}, 4, v{pi}
    v_lshl_or_b32 v{x0}, v{h_}, 9, v{x0}
    s_mul_i32 s30, s26, {ZP}
    s_add_u32 s31, s30, {ZT}
    """)
    for ks in range(4):
        a(f"buffer_load_dwordx4 {v(Z+4*ks,4)}, v{x0}, s[{SWS}:{SWS+3}], s31 offen offset:{1024*ks}")
    y0, y1, y2 = JT + 6, JT + 7, JT + 8
    a(f"""
    v_mov_b32 v{RE}, 0
    v_and_b32 v{y2}, 1, v{L}
    v_lshlrev_b32 v{y2}, 11, v{y2}
    v_lshl_or_b32 v{y2}, v{h_}, 30, v{y2}
    s_lshl_b32 s31, s26, 1
    s_add_u32 s31, s31, {RR}
    buffer_load_short_d16_hi v{RE}, v{y2}, s[{SWS}:{SWS+3}], s31 offen
    s_cmp_eq_u32 s27, 1
    s_cbranch_scc1 K2_NOJOB1
    v_mov_b32 v{R2}, 0
    s_mov_b32 s31, {RR + 1024}
    buffer_load_short_d16_hi v{R2}, v{y2}, s[{SWS}:{SWS+3}], s31 offen
    s_mov_b32 s31, {ZT + 512 * ZP}
    """)
    for ks in range(4):
        a(f"buffer_load_dwordx4 {v(Z2+4*ks,4)}, v{x0}, s[{SWS}:{SWS+3}], s31 offen offset:{1024*ks}")
    a.label("K2_NOJOB1")
    def stage():
        for t in dma() + adv: a(t)
    a(f"""
    v_mov_b32 v{KA}, v{L16}
    v_add_u32 v{NA}, 0x8000, v{L16}
    v_and_b32 v{T0}, 4, v{L}
    v_cmp_eq_u32 vcc, 0, v{T0}
    v_mov_b32 v{T0}, 0x3f803f80
    v_mov_b32 v{IDX}, 0xdddddddd
    v_cndmask_b32 v{SEL}, 0, v{T0}, vcc
    v_xor_b32 v{SEL+2}, v{SEL}, v{T0}
    v_mov_b32 v{SEL+1}, v{SEL}
    v_mov_b32 v{SEL+3}, v{SEL+2}
    """)
    z2 = lambda r: f"v_pk_mov_b32 {v(r,2)}, 0, 0"
    for r in list(range(O, O + 16, 2)) + [LL, LL + 2]:
        a(f"v_mov_b64 {v(r,2)}, 0")
    a("s_mov_b32 s48, s2")
    jobaddr()
    a(f"""
    s_mov_b32 s49, {FLG}
    s_mov_b32 s46, 0
    s_mov_b64 s[{SD}:{SD+1}], s[{SWS}:{SWS+1}]
    s_mov_b64 s[{SD+2}:{SD+3}], s[{SWS+2}:{SWS+3}]
    s_mov_b32 s35, 0
    s_mov_b32 s38, 0x8000
    s_mov_b32 s39, -1
    s_mov_b32 s32, 0x8000
    """)
    a("s_cmp_eq_u32 s27, 0\ns_cbranch_scc1 K2_NOJOB2")
    hf, tf, x5 = JT + 10, JT + 11, JT + 12
    W = JT + 14
    a(f"""
    v_cvt_f32_u32 v{tf}, v{t1}
    v_cvt_f32_u32 v{hf}, v{h_}
    v_mul_f32 v{x0}, {f2u(1/64)}, v{tf}
    v_mul_f32 v{x1}, 4.0, v{hf}
    v_mul_f32 v{x1}, v{x0}, v{x1}
    v_mul_f32 v{x5}, {f2u(5.0)}, v{x0}
    """)
    for k in range(16):
        o = k & 1
        a(f"v_cos_f32 v{W+o}, v{x1}")
        a(f"v_sin_f32 v{W+2+o}, v{x1}")
        if k < 15: a(f"v_add_f32 v{x1}, v{x1}, v{x5 if k % 4 == 3 else x0}")
        if o:
            d = TA + 6 * (k // 4) + (k % 4) // 2
            a(f"v_cvt_pk_bf16_f32 v{d+2}, v{W}, v{W+1}")
            a(f"v_cvt_pk_bf16_f32 v{d+4}, v{W+2}, v{W+3}")
            a(f"v_xor_b32 v{d}, 0x80008000, v{d+4}")
    stage()
    a(f"""
    v_mul_f32 v{hf}, {f2u(16.0)}, v{hf}
    v_mul_f32 v{x0}, {f2u(1/2048)}, v{tf}
    v_mul_f32 v{x1}, v{x0}, v{hf}
    v_mov_b32 v{RE+1}, 0
    """)
    for r in range(RE + 2, RE + 16, 2): a(f"v_mov_b64 {v(r,2)}, 0")
    for k in range(16):
        a(f"v_cos_f32 v{TC+k}, v{x1}")
        a(f"v_sin_f32 v{TS+k}, v{x1}")
        if k < 15: a(f"v_add_f32 v{x1}, v{x1}, v{x0}")
    stage()
    a(f"""
    v_cvt_f32_u32 v{x0}, v{n_}
    v_mul_f32 v{x0}, {f2u(1/32)}, v{x0}
    v_mul_f32 v{x1}, v{x0}, v{hf}
    """)
    for k in range(16):
        o = k & 1
        a(f"v_cos_f32 v{W+o}, v{x1}")
        a(f"v_sin_f32 v{W+2+o}, v{x1}")
        if k < 15: a(f"v_add_f32 v{x1}, v{x1}, v{x0}")
        if o:
            a(f"v_cvt_pk_bf16_f32 v{TB+k//2}, v{W}, v{W+1}")
            a(f"v_cvt_pk_bf16_f32 v{TB+8+k//2}, v{W+2}, v{W+3}")
    a(f"""
    v_lshlrev_b32 v{y0}, 7, v{n_}
    v_lshl_or_b32 v{y0}, v{h_}, 5, v{y0}
    s_lshl_b32 s28, s28, 6
    s_add_u32 s30, s30, s28
    s_add_u32 s30, s30, {YT}
    {dma()[0]}
    s_waitcnt vmcnt({2+5+9})
    """)
    stamp(a, 2)
    a("s_barrier")
    stamp(a, 3)
    a("s_waitcnt vmcnt(9)")
    a.label("K2_JOBC")
    for ks in range(4):
        a(f"{mf} {v(RE,16)}, {v(Z+4*ks,4)}, {v(TA+6*ks+2,4)}, {v(RE,16)}")
        a(f"{mf} {v(IM,16)}, {v(Z+4*ks,4)}, {v(TA+6*ks,4)}, {'0' if ks == 0 else v(IM,16)}")
    PR, PI = Z, Z + 8
    for k in range(0, 16, 2):
        t = JT + 10 + 4 * ((k // 2) % 2)
        a(f"v_pk_mul_f32 {v(t,2)}, {v(RE+k,2)}, {v(TC+k,2)}")
        a(f"v_pk_mul_f32 {v(t+2,2)}, {v(IM+k,2)}, {v(TC+k,2)}")
        a(f"v_pk_fma_f32 {v(t,2)}, {v(IM+k,2)}, {v(TS+k,2)}, {v(t,2)}")
        a(f"v_pk_fma_f32 {v(t+2,2)}, {v(RE+k,2)}, {v(TS+k,2)}, {v(t+2,2)} neg_lo:[1,0,0] neg_hi:[1,0,0]")
        a(f"v_cvt_pk_bf16_f32 v{PR+k//2}, v{t}, v{t+1}")
        a(f"v_cvt_pk_bf16_f32 v{PI+k//2}, v{t+2}, v{t+3}")
        if k == 6:
            a(f"{mf} {v(ACB,16)}, {v(PR,4)}, {v(TB,4)}, 0")
            a(f"{mf} {v(ACB,16)}, {v(PI,4)}, {v(TB+8,4)}, {v(ACB,16)}")
    a(f"{mf} {v(ACB,16)}, {v(PR+4,4)}, {v(TB+4,4)}, {v(ACB,16)}")
    a(f"{mf} {v(ACB,16)}, {v(PI+4,4)}, {v(TB+12,4)}, {v(ACB,16)}")
    for k in range(8): a(f"v_cvt_pk_bf16_f32 v{PK+k}, v{ACB+2*k}, v{ACB+2*k+1}")
    a(f"""
    buffer_store_dwordx4 {v(PK,4)}, v{y0}, s[{SWS}:{SWS+3}], s30 offen sc1
    buffer_store_dwordx4 {v(PK+4,4)}, v{y0}, s[{SWS}:{SWS+3}], s30 offen offset:16 sc1
    s_add_u32 s30, s30, 4096
    s_cmp_lg_u32 s28, 0
    s_cbranch_scc1 K2_NOWRAP
    s_mov_b64 exec, 1
    buffer_store_dword v{PK}, v{y0}, s[{SWS}:{SWS+3}], s30 offen sc1
    s_mov_b64 exec, -1
    K2_NOWRAP:
    s_cmp_eq_u32 s27, 1
    s_cbranch_scc1 K2_START
    s_mov_b32 s27, 1
    s_add_u32 s30, s28, {YT + 512 * YP}
    v_mov_b32 v{RE}, v{R2}
    v_mov_b32 v{RE+1}, 0
    """)
    for r in range(2, 16, 2): a(f"v_mov_b64 {v(RE+r,2)}, 0")
    for r in range(0, 16, 2): a(f"v_mov_b64 {v(Z+r,2)}, {v(Z2+r,2)}")
    a("s_nop 1\ns_branch K2_JOBC")
    a.label("K2_NOJOB2")
    stage(); stage(); a(dma()[0])
    a("s_waitcnt vmcnt(9)")
    stamp(a, 2)
    a("s_barrier")
    stamp(a, 3)
    a.label("K2_START")
    rdK = lambda b, base, tile: [f"ds_read_b128 {v(KF[b]+4*j,4)}, v{base} offset:{tile*4096+j*1024}" for j in range(2)]
    rdV = lambda b, base, tile: [f"ds_read_b128 {v(VF[b]+4*j,4)}, v{base} offset:{tile*4096+2048+j*1024}" for j in range(2)]
    def qk(b, j, c): return f"{mf} {v(S[b],16)}, {v(KF[b]+4*j,4)}, {v(QF_+4*j,4)}, {c if j == 0 else v(S[b],16)}"
    def pv(b, j): return f"v_smfmac_f32_32x32x32_bf16 {v(O,16)}, {v(VF[b]+4*j,4)}, {v(S[b]+8*j,8)}, v{IDX}"
    def lsum(b, j): return f"v_smfmac_f32_16x16x64_bf16 {v(LL,4)}, {v(SEL,4)}, {v(S[b]+8*j,8)}, v{IDX}"
    def rowmax(src, acc, first):
        r = []
        if first: r.append(f"v_max_f32 v{acc}, v{src}, v{src+1}")
        for k in range(2 if first else 0, 16, 2): r.append(f"v_max3_f32 v{acc}, v{src+k}, v{src+k+1}, v{acc}")
        return r
    def setneg(acc):
        r = [f"v_mov_b32 v{acc+1}, v{acc}", f"v_permlane32_swap_b32 v{acc}, v{acc+1}", f"v_max_f32 v{acc}, v{acc}, v{acc+1}",
             f"v_sub_f32 v{NEG}, 0, v{acc}", f"v_sub_f32 v{NEG+1}, 0, v{acc}"]
        for k in range(2, 16, 2): r.append(f"v_mov_b64 {v(NEG+k,2)}, {v(NEG,2)}")
        return r
    for t in rdK(0, KA, 0) + rdK(1, KA, 1) + rdV(0, KA, 0): a(t)
    for r in list(range(S1 + 8, S1 + 16, 2)) + [VF[1] + 4, VF[1] + 6]: a(f"v_mov_b64 {v(r,2)}, 0")
    a(f"v_mov_b32 v{DV}, v{L16}")
    if os.environ.get("WPF", "0") == "1":
        a(f"""
        s_and_b32 s37, s2, 0xf8
        s_add_u32 s37, s37, s3
        s_lshl_b32 s37, s37, 13
        v_lshlrev_b32 v{WA}, 3, v{L16}
        buffer_load_dword v{WB}, v{WA}, s[{SWO}:{SWO+3}], s37 offen
        """)
    a("s_waitcnt lgkmcnt(4)")
    a(qk(0, 0, "0")); a(qk(0, 1, None))
    for t in rowmax(S0, T0, True) + setneg(T0): a(t)
    a(qk(0, 0, v(NEG, 16))); a(qk(0, 1, None))
    a("s_mov_b32 s33, 0\ns_nop 7")
    stamp(a, 4)
    a(".p2align 6")
    a.label("K2_LOOP")
    ex = lambda b, k: f"v_exp_f32 v{S[b]+k}, v{S[b]+k}"
    cv = lambda b, k: f"v_cvt_pk_bf16_f32 v{P[b]+k}, v{S[b]+2*k}, v{S[b]+2*k+1}"
    for i in range(8):
        b = i & 1
        rk = rdK(b, KA, i + 2) if i < 6 else rdK(b, NA, i - 6)
        rv = rdV(b ^ 1, KA, i + 1) if i < 7 else rdV(b ^ 1, NA, 0)
        a(ex(b, 0))
        a("s_waitcnt lgkmcnt(0)")
        a(pv(b ^ 1, 1))
        if i == 6:
            a("s_waitcnt vmcnt(8)\ns_barrier")
        a(rk[0]); a(ex(b, 1)); a(rk[1]); a(ex(b, 2)); a(rv[0]); a(ex(b, 3))
        a(lsum(b ^ 1, 1))
        a(rv[1])
        a(ex(b, 4))
        a(qk(b ^ 1, 0, v(NEG, 16)))
        a(ex(b, 5)); a(ex(b, 6)); a(ex(b, 7))
        a(qk(b ^ 1, 1, None))
        if i == 6:
            a(f"""
            s_add_u32 s21, s21, 0x8000
            s_sub_u32 s60, s21, 0x28000
            s_cselect_b32 s21, s21, s60
            s_mov_b32 m0, s21
            s_add_u32 s22, s22, s38
            s_and_b32 s22, s22, s39
            s_cmp_eq_u32 s33, 4
            s_cbranch_scc1 K2_SWITCH
            K2_SWRET:
            """)
        if i % 2 == 0: a(site((i // 2 + 1) & 3))
        a(ex(b, 8)); a(ex(b, 9)); a(ex(b, 10))
        a(pv(b, 0))
        a(ex(b, 11)); a(ex(b, 12)); a(ex(b, 13))
        a(lsum(b, 0))
        if i == 7:
            a(f"v_mov_b32 v{KA}, v{NA}")
            a("s_add_u32 s32, s32, 0x8000\ns_cmp_eq_u32 s32, 0x28000\ns_cselect_b32 s32, 0, s32")
            a("s_add_u32 s33, s33, 1\ns_cmp_lt_u32 s33, 8")
        a(ex(b, 14))
        if i == 7: a(f"v_add_u32 v{NA}, s32, v{L16}")
        a(ex(b, 15))
    a("s_cbranch_scc1 K2_LOOP")
    a(pv(1, 1)); a(lsum(1, 1))
    stamp(a, 5)
    a("s_mov_b64 exec, 1"); a(cload); a("s_mov_b64 exec, -1")
    a(f"v_mov_b64 {v(T0+1,2)}, 0" if (T0 + 1) % 2 == 0 else "")
    a(f"s_mov_b32 s34, {f2u(2.0**96)}")
    a(f"v_mov_b32 v{T0}, v{LL}")
    for k in range(0, 16, 2): a(f"v_pk_fma_f32 {v(T0+1,2)}, {v(O+k,2)}, 0, {v(T0+1,2)}")
    a(f"""
    v_add_f32 v{T0+1}, v{T0+1}, v{T0+2}
    v_add_f32 v{T0+1}, v{T0+1}, v{T0}
    v_cmp_ngt_f32 vcc, s34, v{T0+1}
    s_cbranch_vccnz K2_SLOW
    """)
    a.label("K2_EPI")
    a(f"v_rcp_f32 v{T0+1}, v{T0}")
    a(f"v_mov_b32 v{T0+2}, v{T0+1}")
    for k in range(0, 16, 2):
        a(f"v_pk_mul_f32 {v(O+k,2)}, {v(O+k,2)}, {v(T0+1,2)}")
        a(f"v_cvt_pk_bf16_f32 v{S0+k//2}, v{O+k}, v{O+k+1}")
        if k == 6: a(f"buffer_store_dwordx4 {v(S0,4)}, v{L16}, s[{SWS}:{SWS+3}], s24 offen sc1")
    a(f"buffer_store_dwordx4 {v(S0+4,4)}, v{L16}, s[{SWS}:{SWS+3}], s24 offen offset:1024 sc1")
    a("s_waitcnt vmcnt(0)")
    stamp(a, 6)
    a("s_barrier")
    a(cchk)
    a("s_cselect_b32 s46, 0, 1")
    a("s_cmp_lg_u32 s3, 0\ns_cbranch_scc1 K2_YL")
    a(f"""
    v_readfirstlane_b32 s60, v{CN}
    s_and_b32 s61, s2, 7
    s_lshl_b32 s61, s61, 3
    s_bfm_b64 s[42:43], 8, s61
    s_cmp_eq_u32 s60, 255
    s_cselect_b64 s[42:43], -1, s[42:43]
    s_cselect_b32 s44, 2, 0
    s_cselect_b32 s46, 1, s46
    """)
    if FORCE: a(f"s_cbranch_scc1 K2_PUB\ns_and_b32 s60, s2, {FORCE}\ns_cmp_eq_u32 s60, 0\ns_cbranch_scc1 K2_ABANDON")
    a("s_cmp_eq_u32 s46, 0\ns_cbranch_scc1 K2_ABANDON")
    a.label("K2_PUB")
    fstore(2)
    a.label("K2_YL")
    for k in range(1, 4): a(site(k))
    a("s_cmp_eq_u32 s46, 0\ns_cbranch_scc1 K2_NOY")
    yload()
    a("s_cmp_lg_u32 s3, 0\ns_cbranch_scc1 K2_JOB")
    a("s_mov_b64 exec, s[42:43]")
    if os.environ.get("POLLMAX"): a("s_mov_b32 s63, 20000")
    a.label("K2_POLL")
    if os.environ.get("POLLMAX"): a(f"s_sub_u32 s63, s63, 1\ns_cbranch_scc1 K2_PEND")
    if os.environ.get("SLEEP"): a(f"s_sleep {os.environ['SLEEP']}")
    a(fload); a("s_waitcnt vmcnt(0)"); a(fmin)
    a(f"v_cmp_eq_u32 vcc, 0, v{T0}\ns_cbranch_vccnz K2_POLL")
    a.label("K2_PEND")
    a(f"v_max3_u32 v{T0}, v{F}, v{F+1}, v{F+2}\nv_max_u32 v{T0}, v{T0}, v{F+3}")
    a(f"v_cmp_lt_u32 vcc, 2, v{T0}\ns_mov_b64 exec, -1\ns_cmp_eq_u64 vcc, 0\ns_cselect_b32 s44, 0, s44\nv_mov_b32 v{M}, s44")
    a.label("K2_MODE")
    a(f"""
    v_lshlrev_b32 v{T0}, 12, v{L}
    v_add_u32 v{T0}, 0x10000, v{T0}
    s_mov_b64 exec, 0xff
    ds_write_b32 v{T0}, v{M}
    s_mov_b64 exec, -1
    s_waitcnt lgkmcnt(0)
    """)
    a.label("K2_JOB")
    def reads(ks):
        r = []
        if ks % 8 == 0: r += [f"v_add_u32 v{WA}, s{50+ks//8}, v{WA0}", f"v_xor_b32 v{WB}, 64, v{WA}"]
        return r + [f"ds_read_b64_tr_b16 {v(WF(ks&3,t)+2*sec,2)}, v{WA+t} offset:{(ks%8)*2048+sec*1024}" for t in range(2) for sec in range(2)]
    oload = lambda ks: f"buffer_load_dwordx4 {v(OFR(ks),4)}, v{L16B if ks & 4 else L16}, s[{SWS}:{SWS+3}], s{54+ks//8} offen offset:{1024*(ks%4)} sc1"
    a("s_waitcnt vmcnt(17)")
    stamp(a, 7)
    a("s_barrier")
    stamp(a, 8)
    if os.environ.get("PRIO"): a("s_cmp_lt_u32 s3, 4\ns_cbranch_scc1 K2_NOPRIO\ns_setprio 2\nK2_NOPRIO:")
    for ks in range(DEPTH): a(oload(ks))
    for ks in range(3):
        for t in reads(ks): a(t)
    a(f"ds_read_b32 v{M}, v{XA}\ns_waitcnt lgkmcnt(0)\nv_readfirstlane_b32 s47, v{M}")
    a("s_cmp_eq_u32 s47, 1\ns_cbranch_scc1 K2_QUIT")
    a("s_cmp_eq_u32 s46, 0\ns_cbranch_scc1 K2_YLATE")
    a.label("K2_GEMM")
    for ks in range(32):
        if ks + 3 < 32:
            for t in reads(ks + 3): a(t)
        a(f"s_waitcnt vmcnt({min(32, ks + DEPTH) - ks - 1}) lgkmcnt({4 * min(3, 31 - ks)})")
        c = "0" if ks == 0 else None
        a(f"{mf} {v(A1,16)}, {v(WF(ks&3,1),4)}, {v(OFR(ks),4)}, {c or v(A1,16)}")
        a(f"{mf} {v(A0,16)}, {v(WF(ks&3,0),4)}, {v(OFR(ks),4)}, {c or v(A0,16)}")
        if ks + DEPTH < 32: a(oload(ks + DEPTH))
        if 2 <= ks < 11: yproc(ks - 2)
    stamp(a, 9)
    a(f"v_xor_b32 v{T0+1}, 0x4000, v{XA}")
    for i in range(4): a(f"ds_write_b128 v{XA}, {v(A1+4*i,4)} offset:{1024*i}")
    for r in range(0, 16, 2): a(f"v_pk_fma_f32 {v(Y+r,2)}, {v(A0+r,2)}, {v(G+2,2)}, {v(Y+r,2)}")
    a("s_waitcnt lgkmcnt(0)\ns_barrier")
    for i in range(4): a(f"ds_read_b128 {v(A1+4*i,4)}, v{T0+1} offset:{1024*i}")
    for i in range(4):
        a(f"s_waitcnt lgkmcnt({3-i})")
        for r in range(4 * i, 4 * i + 4, 2):
            a(f"v_pk_fma_f32 {v(Y+r,2)}, {v(A1+r,2)}, {v(G+2,2)}, {v(Y+r,2)}")
            a(f"v_cvt_pk_bf16_f32 v{A0+r//2}, v{Y+r}, v{Y+r+1}")
        if i % 2: a(f"buffer_store_dwordx4 {v(A0+2*(i-1),4)}, v{OA}, s[{SOUT}:{SOUT+3}], 0 offen offset:{8*(i-1)}")
    a("s_cmp_eq_u32 s47, 2\ns_cbranch_scc1 K2_HELP")
    a.label("K2_FIN")
    if STAMPS: a("s_waitcnt vmcnt(0)")
    stamp(a, 10); stamp(a, 11, True)
    stamp_flush(a, 12, SWS, 1, 3)
    a.label("K2_END")
    a("s_endpgm")
    a.label("K2_SWITCH")
    LPF = f"""s_add_u32 s37, s40, {3*524288}
    s_and_b32 s37, s37, 0x1fffff
    v_lshlrev_b32 v{WA}, 7, v{L16}
    s_mov_b64 exec, 0xffffffff
    buffer_load_dword v{WB}, v{WA}, s[{SWO}:{SWO+3}], s37 offen
    s_mov_b64 exec, -1""" if os.environ.get("LPF", "1") == "1" else ""
    a(f"""
    s_mov_b64 s[{SD}:{SD+1}], s[{SWO}:{SWO+1}]
    s_mov_b64 s[{SD+2}:{SD+3}], s[{SWO+2}:{SWO+3}]
    s_mov_b32 s22, s40
    s_movk_i32 s35, 15360
    s_mov_b32 s38, {524288 - 4*15360}
    s_mov_b32 s39, 0x1fffff
    v_mov_b32 v{DV}, v{WO}
    {LPF}
    s_cmp_lg_u32 s3, 0
    s_cbranch_scc1 K2_SWRET
    v_mov_b32 v{CN}, 1
    s_mov_b64 exec, 1
    buffer_atomic_add v{CN}, v{L16}, s[{SWS}:{SWS+3}], s49 offen offset:1024 sc0 sc1
    s_mov_b64 exec, -1
    s_branch K2_SWRET
    """)
    a.label("K2_NOY")
    a("s_waitcnt vmcnt(0)\ns_branch K2_JOB")
    a.label("K2_ABANDON")
    fstore(3)
    a(f"v_mov_b32 v{M}, 1\ns_branch K2_MODE")
    a.label("K2_QUIT")
    a("s_waitcnt vmcnt(0)\ns_endpgm")
    a.label("K2_YLATE")
    yload()
    a("s_waitcnt vmcnt(0)")
    a("s_branch K2_GEMM")
    a.label("K2_HELP")
    a("s_cmp_eq_u32 s48, s2\ns_cselect_b32 s48, -1, s48")
    a.label("K2_HNEXT")
    a(f"""
    s_add_u32 s48, s48, 1
    s_cmp_ge_u32 s48, 256
    s_cbranch_scc1 K2_FIN
    s_lshl_b32 s60, s48, 2
    s_add_u32 s60, s60, {FLG}
    buffer_load_dword v{F}, v{L16}, s[{SWS}:{SWS+3}], s60 offen sc1
    s_waitcnt vmcnt(0)
    v_readfirstlane_b32 s60, v{F}
    s_cmp_eq_u32 s60, 3
    s_cbranch_scc0 K2_HNEXT
    s_barrier
    """)
    jobaddr()
    a("s_lshl_b32 s59, s3, 12")
    for c in range(4):
        a(f"s_add_u32 m0, s59, {(0x18000, 0x20000, 0, 0x8000)[c]}\ns_nop 0")
        wodma(40)
        a("s_and_b32 s40, s40, 0x1fffff")
    a(f"""
    s_mov_b32 s46, 0
    v_mov_b32 v{M}, 2
    ds_write_b32 v{XA}, v{M}
    s_waitcnt vmcnt(0) lgkmcnt(0)
    s_barrier
    s_branch K2_JOB
    """)
    a.label("K2_SLOW")
    gl = lambda r, off: f"buffer_load_dwordx4 {v(r,4)}, v{L16}, s[{SWS}:{SWS+3}], s45 offen offset:{off}"
    a(f"""
    s_waitcnt lgkmcnt(0)
    v_mov_b32 v{T0}, 0xff800000
    s_mov_b32 s45, s20
    s_mov_b32 s33, 0
    """)
    a.label("K2_SL1")
    a(gl(KF[0], 0)); a(gl(KF[0] + 4, 1024))
    a("s_add_u32 s45, s45, 4096\ns_waitcnt vmcnt(0)")
    a(qk(0, 0, "0")); a(qk(0, 1, None))
    for t in rowmax(S0, T0, False): a(t)
    a("s_add_u32 s33, s33, 1\ns_cmp_lt_u32 s33, 64\ns_cbranch_scc1 K2_SL1")
    for t in setneg(T0): a(t)
    for r in list(range(O, O + 16, 2)) + [LL, LL + 2]: a(f"v_mov_b64 {v(r,2)}, 0")
    a("s_mov_b32 s45, s20\ns_mov_b32 s33, 0")
    a.label("K2_SL2")
    a(gl(KF[0], 0)); a(gl(KF[0] + 4, 1024)); a(gl(VF[0], 2048)); a(gl(VF[0] + 4, 3072))
    a("s_add_u32 s45, s45, 4096\ns_waitcnt vmcnt(0)")
    a(qk(0, 0, v(NEG, 16))); a(qk(0, 1, None))
    for k in range(16): a(ex(0, k))
    a(pv(0, 0)); a(pv(0, 1)); a(lsum(0, 0)); a(lsum(0, 1))
    a("s_add_u32 s33, s33, 1\ns_cmp_lt_u32 s33, 64\ns_cbranch_scc1 K2_SL2")
    a(f"s_nop 7\ns_nop 7\nv_mov_b32 v{T0}, v{LL}")
    a("s_branch K2_EPI")
```
